```python
import torch

def _softmax(x, axis=-1):
    return torch.softmax(x, dim=axis)
def _gelu(x):
    return torch.nn.functional.gelu(x, approximate="tanh")
def _silu(x):
    return torch.nn.functional.silu(x)
def _sigmoid(x):
    return torch.sigmoid(x)
def _layernorm(x, axis=-1, eps=1e-5):
    m = x.mean(dim=axis, keepdim=True)
    v = x.var(dim=axis, keepdim=True, unbiased=False)
    return (x - m) / torch.sqrt(v + eps)
def _scatter_add(tgt, idx, src, axis=0):
    return tgt.clone().index_add_(axis, idx, src)
def _segment_sum(src, seg, n):
    out = torch.zeros((n,) + src.shape[1:], dtype=src.dtype)
    return out.index_add_(0, seg, src)
def _pad(x, pw):
    flat = tuple(v for pair in reversed(pw) for v in pair)
    return torch.nn.functional.pad(x, flat)

kernel_name = 'recurrent_scan__linear_kernel_hedgehog__mixer_token_mlp__prompt'

def setup_inputs():

    _w = (lambda a: (lambda t: t.to(torch.bfloat16) if t.is_floating_point() else t)(torch.as_tensor(a)))
    def _A_setup():
        B, S, D, H = 1, 2048, 512, 32
        Dh = D // H
        return {
            "x": _w((lambda *s: torch.randn(*s, dtype=torch.bfloat16) * 0.05)(B, S, D)),
            "wqkv": _w((lambda *s: torch.randn(*s, dtype=torch.bfloat16) * 0.4)(D, 3 * D)),
            "w_phi": _w((lambda *s: torch.randn(*s, dtype=torch.bfloat16) * 0.4)(H, Dh, Dh) * (Dh ** -0.5)),
            "wo": _w((lambda *s: torch.randn(*s, dtype=torch.bfloat16) * 0.2)(D, D)),
        }
    _A_in = _A_setup()

    def _B_setup():
        B, S, D, F = 1, 2048, 512, 1376
        return {
            "x": _w((lambda *s: torch.randn(*s, dtype=torch.bfloat16) * 0.05)(B, S, D)),
            "w1": _w((lambda *s: torch.randn(*s, dtype=torch.bfloat16) * 0.4)(S, F) * (S ** -0.5)),
            "b1": _w((lambda *s: torch.randn(*s, dtype=torch.bfloat16) * 3.2)(F) * 0.02),
            "w2": _w((lambda *s: torch.randn(*s, dtype=torch.bfloat16) * 0.4)(F, S) * (F ** -0.5)),
            "b2": _w((lambda *s: torch.randn(*s, dtype=torch.bfloat16) * 0.8)(S) * 0.02),
        }
    _B_in = _B_setup()

    return {
        "A_x": _A_in["x"],
        "A_wqkv": _A_in["wqkv"],
        "A_w_phi": _A_in["w_phi"],
        "A_wo": _A_in["wo"],
        "B_x": _B_in["x"],
        "B_w1": _B_in["w1"],
        "B_b1": _B_in["b1"],
        "B_w2": _B_in["w2"],
        "B_b2": _B_in["b2"],
    }

def reference(A_x, A_wqkv, A_w_phi, A_wo, B_x, B_w1, B_b1, B_w2, B_b2):
    def _A_ref(x, wqkv, w_phi, wo):
        B, S, D = x.shape
        H = 32; Dh = D // H
        qkv = (lambda x, *d: x.permute(*d))((x @ wqkv).reshape(B, S, 3, H, Dh), 2, 0, 3, 1, 4)
        q, k, v = qkv[0], qkv[1], qkv[2]
        pq = torch.einsum("bhsd,hdf->bhsf", q, w_phi)
        pk = torch.einsum("bhsd,hdf->bhsf", k, w_phi)
        phi_q = torch.concatenate([_softmax(pq, axis=-1), _softmax(-pq, axis=-1)], axis=-1)
        phi_k = torch.concatenate([_softmax(pk, axis=-1), _softmax(-pk, axis=-1)], axis=-1)
        kv = torch.einsum("bhsf,bhsd->bhfd", phi_k, v)
        z  = torch.einsum("bhsf->bhf", phi_k)
        num = torch.einsum("bhqf,bhfd->bhqd", phi_q, kv)
        den = torch.einsum("bhqf,bhf->bhq", phi_q, z)[..., None] + 1e-6
        o = num / den
        return (lambda x, *d: x.permute(*d))(o, 0, 2, 1, 3).reshape(B, S, D) @ wo

    def _B_ref(x, w1, b1, w2, b2):
        B, S, D = x.shape
        h = _layernorm(x, axis=-1)
        u = torch.einsum("bsd,sf->bdf", h, w1) + b1
        u = _gelu(u)
        y = torch.einsum("bdf,fs->bds", u, w2) + b2
        return (lambda x, *d: x.permute(*d))(y, 0, 2, 1)

    x = A_x
    xn = _layernorm(x, axis=-1)
    s = _A_ref(xn, A_wqkv, A_w_phi, A_wo)
    g = _silu(_B_ref(xn, B_w1, B_b1, B_w2, B_b2))
    return x + s * g
```

```python
import re

TRANS = ("v_exp_f32", "v_log_f32", "v_rcp_f32", "v_rsq_f32", "v_sqrt_f32", "v_sin_f32", "v_cos_f32", "v_rcp_iflag_f32")
_REG = re.compile(r"(?<![\w.])([vas])(\d+)(?![\w\[])|(?<![\w.])([vas])\[(\d+):(\d+)\]|(?<![\w.])(vcc|exec|m0|scc)(?:_lo|_hi)?(?![\w])")

def regs_of(op):
    out = []
    for m in _REG.finditer(op):
        if m.group(1):
            out.append((m.group(1), int(m.group(2))))
        elif m.group(3):
            out += [(m.group(3), i) for i in range(int(m.group(4)), int(m.group(5)) + 1)]
        else:
            out.append((m.group(6), 0))
    return out

def split_ops(rest):
    ops, depth, cur = [], 0, ""
    for ch in rest:
        if ch in "[(": depth += 1
        if ch in "])": depth -= 1
        if ch == "," and depth == 0:
            ops.append(cur.strip()); cur = ""
        else:
            cur += ch
    if cur.strip(): ops.append(cur.strip())
    return ops

class Ins:
    __slots__ = ("text", "mn", "kind", "w", "r", "passes", "srcc", "ab", "dpp", "data", "lanesel", "ws", "dma", "sdwa")
    def __init__(self, text):
        self.text = text
        t = text.split(";")[0].strip()
        parts = t.split(None, 1)
        mn = parts[0]; rest = parts[1] if len(parts) > 1 else ""
        self.mn = mn
        ops = split_ops(rest)
        self.w, self.r = [], []
        self.passes = 0; self.srcc = []; self.ab = []; self.dpp = False; self.data = []; self.lanesel = []
        self.ws = 1; self.dma = False; self.sdwa = False
        if mn.startswith("v_mfma"):
            self.kind = "mfma"
            self.passes = 8 if "32x32" in mn else 4
            self.w = regs_of(ops[0]); self.ab = regs_of(ops[1]) + regs_of(ops[2]); self.srcc = regs_of(ops[3])
            self.r = self.ab + self.srcc
        elif mn.startswith("v_"):
            self.kind = "trans" if mn.replace("_e32", "").replace("_e64", "") in TRANS else "valu"
            self.dpp = ("_dpp" in mn) or any(k in rest for k in ("quad_perm", "row_shr", "row_shl", "row_ror", "row_mirror", "row_half_mirror", "row_bcast", "row_newbcast"))
            self.sdwa = "_sdwa" in mn and "dst_sel:DWORD" not in rest
            if mn.startswith("v_permlane") and "swap" in mn or mn.startswith("v_swap"):
                self.w = regs_of(ops[0]) + regs_of(ops[1]); self.r = list(self.w)
            elif mn.startswith(("v_add_co", "v_sub_co", "v_addc_co", "v_subb_co", "v_subrev_co", "v_div_scale", "v_mad_u64")):
                self.w = regs_of(ops[0]) + regs_of(ops[1])
                for o in ops[2:]: self.r += regs_of(o)
            else:
                self.w = regs_of(ops[0])
                for o in ops[1:]: self.r += regs_of(o)
                if mn.startswith(("v_fmac", "v_dot2c", "v_writelane", "v_pk_fmac")) or self.dpp: self.r += regs_of(ops[0])
                if mn.startswith("v_cmpx"): self.w.append(("exec", 0))
                if mn.startswith(("v_readlane", "v_writelane")): self.lanesel = [x for x in regs_of(ops[2]) if x[0] in ("s", "vcc")]
        elif mn.startswith(("buffer_", "global_", "flat_")):
            self.kind = "vmem"
            if mn in ("buffer_wbl2", "buffer_inv"):
                pass
            elif " lds" in (" " + rest) and "load" in mn and re.search(r"\blds\b", rest):
                self.dma = True
                for o in ops: self.r += regs_of(o)
                self.r.append(("m0", 0))
            elif "load" in mn:
                self.w = regs_of(ops[0])
                for o in ops[1:]: self.r += regs_of(o)
            else:
                for o in ops: self.r += regs_of(o)
                if mn.startswith("buffer_"):
                    d = regs_of(ops[0])
                else:
                    d = regs_of(ops[1])
                if len(d) >= 3: self.data = d
                if "atomic" in mn and "sc0" in rest: self.w = regs_of(ops[0])
        elif mn.startswith("ds_"):
            self.kind = "ds"
            if "read" in mn or "_rtn" in mn or "permute" in mn or "swizzle" in mn:
                self.w = regs_of(ops[0])
                for o in ops[1:]: self.r += regs_of(o)
            else:
                for o in ops: self.r += regs_of(o)
        elif mn.startswith("s_"):
            self.kind = "salu"
            if mn == "s_nop":
                self.ws = int(rest, 0) + 1
            elif mn.startswith(("s_cmp", "s_cbranch", "s_branch", "s_waitcnt", "s_barrier", "s_sleep", "s_endpgm", "s_setprio", "s_bitcmp")):
                for o in ops: self.r += regs_of(o)
            else:
                if ops: self.w = regs_of(ops[0])
                for o in ops[1:]: self.r += regs_of(o)
                if "saveexec" in mn: self.w.append(("exec", 0))
        else:
            raise ValueError("unknown instr: " + text)

def need(prev, cur):
    n = 0
    pw = set(prev.w); cr = set(cur.r); cw = set(cur.w)
    isv = lambda x: x[0] in ("v", "a")
    iss = lambda x: x[0] in ("s", "vcc")
    if prev.kind in ("valu", "trans"):
        vw = {x for x in pw if isv(x)}; sw = {x for x in pw if iss(x)}
        if cur.kind == "mfma" and vw & cr: n = max(n, 2)
        if cur.kind in ("valu", "trans"):
            if cur.dpp and vw & cr: n = max(n, 2)
            if cur.mn.startswith("v_permlane") and vw & cr: n = max(n, 2)
            if cur.mn.startswith(("v_readlane", "v_readfirstlane")) and vw & cr: n = max(n, 1)
            if sw & cr: n = max(n, 2)
            if sw & set(cur.lanesel): n = max(n, 4)
            if prev.sdwa and vw & (cr | cw): n = max(n, 1)
            if prev.mn.startswith("v_dot") and vw & (cr | cw):
                if not (prev.mn == cur.mn): n = max(n, 3)
                else:
                    n = max(n, 0)
        if prev.kind == "trans" and cur.kind != "trans" and vw & cr: n = max(n, 1)
        if cur.kind == "vmem" and sw & cr: n = max(n, 5)
        if cur.kind == "salu" and sw & cr: n = max(n, 1)
        if ("exec", 0) in pw:
            if cur.kind == "mfma": n = max(n, 4)
            if cur.dpp: n = max(n, 5)
            if cur.mn.startswith(("v_readlane", "v_readfirstlane", "v_writelane", "v_permlane")): n = max(n, 4)
    if prev.kind == "mfma":
        big = 12 if prev.passes == 8 else 8
        if cur.kind == "mfma":
            if pw & set(cur.ab): n = max(n, big)
            if pw & set(cur.srcc):
                if not (prev.w == cur.srcc and prev.passes == cur.passes): n = max(n, big - 2)
            elif pw & cw: n = max(n, big - 2)
        elif cur.kind in ("valu", "trans", "vmem", "ds"):
            if pw & (cr | cw): n = max(n, big)
            if cur.kind in ("valu", "trans") and set(prev.srcc) & cw: n = max(n, prev.passes - 1)
    if prev.kind == "salu" and ("m0", 0) in pw and (cur.dma or cur.mn.startswith("v_writelane") or cur.mn.startswith("v_readlane")): n = max(n, 1)
    if prev.kind == "vmem" and prev.data and set(prev.data) & cw:
        n = max(n, 2 if cur.kind in ("valu", "trans", "mfma") else 1)
    return n

class Asm:
    def __init__(self):
        self.items = []
        self.vq = []
        self.lq = []
        self.track = True
        self.nlab = 0
    def raw(self, s): self.items.append(s)
    def c(self, s): self.items.append("    ; " + s)
    def label(self, name): self.items.append(name + ":")
    def newlabel(self, p="L"):
        self.nlab += 1; return f"{p}_{self.nlab}"
    def e(self, s, tag=None):
        for line in s.split("\n"):
            line = line.strip()
            if not line: continue
            ins = Ins(line)
            self.items.append(ins)
            if not self.track: continue
            if ins.kind == "vmem": self.vq.append(tag)
            if ins.kind == "ds": self.lq.append(tag)
            if ins.mn == "s_waitcnt":
                m = re.search(r"vmcnt\((\d+)\)", line)
                if m:
                    n = int(m.group(1))
                    if len(self.vq) > n: self.vq = self.vq[len(self.vq) - n:] if n else []
                m = re.search(r"lgkmcnt\((\d+)\)", line)
                if m:
                    n = int(m.group(1))
                    if len(self.lq) > n: self.lq = self.lq[len(self.lq) - n:] if n else []
    def _cnt(self, q, tags):
        last = -1
        for i, t in enumerate(q):
            if t in tags: last = i
        return None if last < 0 else len(q) - 1 - last
    def wait(self, v=(), l=()):
        parts = []
        n = self._cnt(self.vq, v)
        if n is not None: parts.append(f"vmcnt({min(n,63)})")
        n = self._cnt(self.lq, l)
        if n is not None: parts.append(f"lgkmcnt({min(n,15)})")
        if parts: self.e("s_waitcnt " + " ".join(parts))
    def wait_tag(self, *tags, extra=""):
        last = -1
        for i, t in enumerate(self.vq):
            if t in tags: last = i
        if last < 0:
            if extra: self.e(f"s_waitcnt {extra}")
            return
        n = len(self.vq) - 1 - last
        assert n <= 63, n
        self.e(f"s_waitcnt vmcnt({n}) {extra}".strip())
    def render(self):
        out = []; hist = []
        nops = 0
        for it in self.items:
            if isinstance(it, str):
                out.append(it)
                continue
            req = 0; dist = 0
            for p in reversed(hist):
                nd = need(p, it)
                if nd - dist > req: req = nd - dist
                dist += p.ws
                if dist >= 12: break
            while req > 0:
                k = min(req, 16)
                nop = Ins(f"s_nop {k-1}"); out.append("    " + nop.text); hist.append(nop); req -= k; nops += 1
            out.append("    " + it.text); hist.append(it)
            if len(hist) > 32: hist = hist[-32:]
        self.nops = nops
        return "\n".join(out) + "\n"
```

```python
import sys, math
from asmlib import Asm

NAME = "recurrent_scan__linear_kernel_hedgehog__mixer_token_mlp__prompt"
HDR = open("cdna_kernels/" + NAME + ".s.ref").read().split("; Override launch geometry")[0]

XN_OFF, HF_OFF, OF_OFF, UF_OFF, KV_OFF, FL_OFF, STAMP_OFF = 0, 0x200000, 0x400000, 0x600000, 0x800000, 0x820000, 0x900000
FL_LN, FL_KV, FL_O, FL_U = FL_OFF, FL_OFF + 0x8000, FL_OFF + 0xC000, FL_OFF + 0x10000
WS_SIZE = 0x1000000
UPITCH = 45
LDS_BYTES = 163840
X, WQKV, WPHI, WO, W1, B1, W2, B2, OUT, DBG, WS = [f"s[{i}:{i+3}]" for i in range(4, 48, 4)]
SRD_SIZES = [2097152, 1572864, 16384, 524288, 5636096, 2752, 5636096, 4096, 2097152, 256, WS_SIZE]
SRD_PTR = [64, 66, 68, 70, 74, 76, 78, 80, 82, 84, 86]
sW, sG, sJ = "s48", "s49", "s50"
sN0, sN1, sNON = "s52", "s53", "s[52:53]"
LOG2E = 1.4426950408889634
SPIN_MAX = 20000

def f2h(x):
    import struct
    return "0x%08x" % struct.unpack("<I", struct.pack("<f", x))[0]

class G:
    def __init__(self, stamps=False):
        self.a = Asm(); self.stamps = stamps; self.nst = 0
    def stamp(self, idx):
        if not self.stamps: return
        a = self.a
        a.e("s_memrealtime s[98:99]"); a.e("s_waitcnt lgkmcnt(0)"); a.e(f"v_writelane_b32 v7, s98, {idx}")
    def bf16r(self, dst, src):
        a = self.a
        a.e(f"v_cvt_pk_bf16_f32 {dst}, {src}, {src}"); a.e(f"v_lshlrev_b32 {dst}, 16, {dst}")
    def unpack(self, dst0, src0, n):
        for i in range(n):
            self.a.e(f"v_lshlrev_b32 v{dst0+2*i}, 16, v{src0+i}")
            self.a.e(f"v_and_b32 v{dst0+2*i+1}, s97, v{src0+i}")
    def pack(self, dst0, src0, n):
        for i in range(n):
            self.a.e(f"v_cvt_pk_bf16_f32 v{dst0+i}, v{src0+2*i}, v{src0+2*i+1}")
    def wave0_begin(self):
        a = self.a; lab = a.newlabel("Lw0")
        a.e(f"s_cmp_lg_u32 {sW}, 0"); a.e(f"s_cbranch_scc1 {lab}"); a.track = False
        return lab
    def wave0_end(self, lab):
        self.a.label(lab); self.a.track = True; self.a.e("s_nop 0")
    def flag_store(self, soff_reg):
        a = self.a
        a.e(f"v_mov_b32 v2, {sN0}"); a.e(f"v_mov_b32 v3, {sN1}"); a.e("v_mov_b32 v4, 0")
        a.e("s_mov_b64 exec, 1")
        a.e(f"buffer_store_dwordx2 v[2:3], v4, {WS}, {soff_reg} offen sc1")
        a.e("s_mov_b64 exec, -1")
    def poll(self, vaddr, nld=1):
        a = self.a; lp = a.newlabel("Lpoll"); dn = a.newlabel("Lpd")
        a.e("s_mov_b32 s96, 0")
        a.label(lp)
        for i in range(nld):
            a.e(f"s_mov_b32 s95, {i*8192}")
            a.e(f"buffer_load_dwordx2 v[{8+2*i}:{9+2*i}], {vaddr}, {WS}, s95 offen sc1")
        a.e("s_waitcnt vmcnt(0)")
        a.e(f"v_cmp_ne_u64 vcc, {sNON}, v[8:9]")
        for i in range(1, nld):
            a.e(f"v_cmp_ne_u64 s[92:93], {sNON}, v[{8+2*i}:{9+2*i}]")
            a.e("s_or_b64 vcc, vcc, s[92:93]")
        a.e("s_add_u32 s96, s96, 1")
        a.e("s_cmp_eq_u64 vcc, 0"); a.e(f"s_cbranch_scc1 {dn}")
        a.e(f"s_cmp_gt_u32 s96, {SPIN_MAX}"); a.e(f"s_cbranch_scc1 {dn}")
        a.e("s_sleep 1"); a.e(f"s_branch {lp}")
        a.label(dn)
    def prologue(self):
        a = self.a
        a.e("s_cmp_ge_u32 s2, 256"); a.e("s_cbranch_scc1 L_end")
        a.e("s_load_dwordx16 s[64:79], s[0:1], 0"); a.e("s_load_dwordx8 s[80:87], s[0:1], 64")
        if self.stamps:
            a.e("s_memrealtime s[98:99]")
        a.e("v_and_b32 v1, 63, v0"); a.e("v_lshrrev_b32 v2, 6, v0"); a.e(f"v_readfirstlane_b32 {sW}, v2")
        a.e(f"s_and_b32 {sG}, s2, 7"); a.e(f"s_lshr_b32 {sJ}, s2, 3")
        a.e("s_mov_b32 s97, 0xffff0000")
        for i, sz in enumerate(SRD_SIZES):
            a.e(f"s_mov_b32 s{4+4*i+2}, {sz}"); a.e(f"s_mov_b32 s{4+4*i+3}, 0x20000")
        a.e("v_lshlrev_b32 v6, 4, v1")
        a.e(f"s_lshl_b32 s54, s2, 3"); a.e(f"s_add_u32 s54, s54, {sW}"); a.e("s_lshl_b32 s54, s54, 10")
        a.e("s_waitcnt lgkmcnt(0)")
        a.e("s_mov_b32 s4, s64"); a.e("s_mov_b32 s5, s65")
        a.e(f"buffer_load_dwordx4 v[16:19], v6, {X}, s54 offen", tag="xrow")
        if self.stamps:
            a.e("v_mov_b32 v7, 0"); a.e("v_writelane_b32 v7, s98, 0")
        for i, p in enumerate(SRD_PTR):
            if i == 0: continue
            a.e(f"s_mov_b32 s{4+4*i}, s{p}"); a.e(f"s_mov_b32 s{4+4*i+1}, s{p+1}")
        lab = a.newlabel("Lnon")
        a.e(f"s_or_b32 s54, s2, {sW}"); a.e("s_cmp_lg_u32 s54, 0"); a.e(f"s_cbranch_scc1 {lab}")
        a.track = False
        a.e("s_memrealtime s[92:93]"); a.e("s_waitcnt lgkmcnt(0)"); a.e("s_or_b32 s93, s93, 0x40000000")
        a.e("v_mov_b32 v2, s92"); a.e("v_mov_b32 v3, s93"); a.e("v_mov_b32 v4, 0")
        a.e("s_mov_b64 exec, 1")
        a.e(f"buffer_store_dwordx2 v[2:3], v4, {DBG}, 0 offen sc1")
        a.e("s_mov_b64 exec, -1")
        a.track = True
        a.label(lab)
    def ln_row(self, src, dst):
        a = self.a
        F, T = 20, 28
        self.unpack(F, src, 4)
        a.e(f"v_readfirstlane_b32 s90, v{F}")
        for i in range(8): a.e(f"v_subrev_f32 v{T+i}, s90, v{F+i}")
        a.e(f"v_add_f32 v36, v{T}, v{T+1}"); a.e(f"v_mul_f32 v37, v{T}, v{T}")
        a.e(f"v_fmac_f32 v37, v{T+1}, v{T+1}")
        for i in range(2, 8):
            a.e(f"v_add_f32 v36, v36, v{T+i}"); a.e(f"v_fmac_f32 v37, v{T+i}, v{T+i}")
        for ctl in ("quad_perm:[1,0,3,2]", "quad_perm:[2,3,0,1]", "row_half_mirror", "row_mirror"):
            a.e(f"v_add_f32_dpp v36, v36, v36 {ctl} row_mask:0xf bank_mask:0xf")
            a.e(f"v_add_f32_dpp v37, v37, v37 {ctl} row_mask:0xf bank_mask:0xf")
        a.e("v_permlane16_swap_b32 v36, v37"); a.e("v_add_f32 v36, v36, v37"); a.e("v_mov_b32 v37, v36")
        a.e("v_permlane32_swap_b32 v36, v37"); a.e("v_add_f32 v36, v36, v37")
        a.e("v_mul_f32 v36, 0x3b000000, v36")
        a.e("v_readlane_b32 s91, v36, 0"); a.e("v_readlane_b32 s92, v36, 16")
        a.e("v_mov_b32 v38, s91")
        a.e("v_add_f32 v39, s90, v38")
        a.e("v_fma_f32 v40, -v38, v38, s92")
        a.e("v_max_f32 v40, 0, v40")
        a.e("v_cvt_pk_bf16_f32 v39, v39, v40")
        a.e("v_and_b32 v40, s97, v39"); a.e("v_lshlrev_b32 v39, 16, v39")
        a.e(f"v_add_f32 v40, {f2h(1e-5)}, v40"); self.bf16r("v40", "v40")
        a.e("v_sqrt_f32 v40, v40"); self.bf16r("v40", "v40")
        a.e("v_rcp_f32 v40, v40")
        for i in range(8): a.e(f"v_sub_f32 v{T+i}, v{F+i}, v39")
        self.pack(44, T, 4); self.unpack(T, 44, 4)
        for i in range(8): a.e(f"v_mul_f32 v{T+i}, v{T+i}, v40")
        self.pack(dst, T, 4)
    def ln_stage(self, mid_dma, kvzero=False):
        a = self.a
        LX, LH = 131072, 131072 + 8320
        a.wait(v=("xrow",))
        self.stamp(1)
        a.e("v_mov_b32 v4, 0")
        a.e(f"buffer_load_dwordx2 v[56:57], v4, {DBG}, 0 offen sc1", tag="nonce")
        self.ln_row(16, 48)
        self.ln_row(48, 52)
        a.e(f"s_mul_i32 s54, {sW}, 1040"); a.e(f"s_add_u32 s54, s54, {LX}"); a.e("v_add_u32 v2, s54, v6")
        a.e(f"s_mul_i32 s54, {sW}, 1088"); a.e(f"s_add_u32 s54, s54, {LH}"); a.e("v_add_u32 v3, s54, v6")
        a.e("ds_write_b128 v2, v[48:51]"); a.e("ds_write_b128 v3, v[52:55]")
        a.e("v_and_b32 v20, 7, v1"); a.e("v_lshrrev_b32 v21, 3, v1")
        a.e("v_mul_u32_u24 v22, 1040, v20"); a.e("v_lshl_add_u32 v22, v21, 4, v22")
        a.e(f"s_lshl_b32 s54, {sW}, 7"); a.e(f"s_add_u32 s54, s54, {LX}"); a.e("v_add_u32 v22, s54, v22")
        a.e("v_lshlrev_b32 v23, 9, v21"); a.e("v_lshl_add_u32 v23, v20, 4, v23")
        a.e("s_lshr_b32 s55, s2, 2"); a.e("s_lshl_b32 s60, s55, 15"); a.e("s_and_b32 s61, s2, 3"); a.e("s_lshl_b32 s62, s61, 7")
        a.e("s_add_u32 s60, s60, s62"); a.e(f"s_lshl_b32 s62, {sW}, 12"); a.e("s_add_u32 s60, s60, s62")
        if XN_OFF: a.e(f"s_add_u32 s60, s60, {XN_OFF}")
        a.e("v_bfe_u32 v24, v1, 2, 2"); a.e("v_mul_u32_u24 v24, 1088, v24")
        a.e("v_lshrrev_b32 v25, 4, v1"); a.e("v_lshl_add_u32 v24, v25, 5, v24")
        a.e("v_and_b32 v26, 3, v1"); a.e("v_lshl_add_u32 v24, v26, 3, v24")
        a.e(f"s_lshl_b32 s54, {sW}, 7"); a.e(f"s_add_u32 s54, s54, {LH}"); a.e("v_add_u32 v24, s54, v24")
        a.e("v_lshlrev_b32 v27, 16, v25"); a.e("v_and_b32 v26, 15, v1"); a.e("v_lshl_add_u32 v27, v26, 4, v27")
        a.e("s_lshl_b32 s63, s55, 10"); a.e("s_lshl_b32 s62, s61, 8"); a.e("s_add_u32 s63, s63, s62")
        a.e(f"s_lshl_b32 s62, {sW}, 18"); a.e("s_add_u32 s63, s63, s62"); a.e(f"s_add_u32 s63, s63, {HF_OFF}")
        a.e("s_waitcnt lgkmcnt(0)"); a.e("s_barrier")
        a.e("ds_read_b128 v[48:51], v22")
        a.e("ds_read_b64_tr_b16 v[52:53], v24"); a.e(f"ds_read_b64_tr_b16 v[54:55], v24 offset:{4*1088}")
        if kvzero:
            for i in range(4): a.e(f"v_mov_b32 v{28+i}, 0")
            a.e("v_lshlrev_b32 v32, 4, v0"); a.e(f"s_lshl_b32 s54, {sG}, 14"); a.e(f"s_add_u32 s54, s54, {KV_OFF}")
            a.e(f"buffer_store_dwordx4 v[28:31], v32, {WS}, s54 offen sc1", tag="lnst")
            a.e("s_add_u32 s54, s54, 8192")
            a.e(f"buffer_store_dwordx4 v[28:31], v32, {WS}, s54 offen sc1", tag="lnst")
        a.e("s_waitcnt lgkmcnt(2)")
        a.e(f"buffer_store_dwordx4 v[48:51], v23, {WS}, s60 offen sc1", tag="lnst")
        a.e("s_waitcnt lgkmcnt(0)")
        a.e(f"buffer_store_dwordx4 v[52:55], v27, {WS}, s63 offen sc1", tag="lnst")
        self.stamp(2)
        mid_dma()
        a.wait(v=("lnst", "nonce"))
        a.e("s_barrier")
        self.stamp(3)
        lab = self.wave0_begin()
        lp = a.newlabel("Lnp"); dn = a.newlabel("Lnd")
        a.e("s_mov_b32 s96, 0")
        a.label(lp)
        a.e(f"v_readfirstlane_b32 {sN0}, v56"); a.e(f"v_readfirstlane_b32 {sN1}, v57")
        a.e(f"s_cmp_lg_u32 {sN1}, 0"); a.e(f"s_cbranch_scc1 {dn}")
        a.e("s_add_u32 s96, s96, 1"); a.e(f"s_cmp_gt_u32 s96, {SPIN_MAX}"); a.e(f"s_cbranch_scc1 {dn}")
        a.e("s_sleep 1")
        a.e(f"buffer_load_dwordx2 v[56:57], v4, {DBG}, 0 offen sc1"); a.e("s_waitcnt vmcnt(0)")
        a.e(f"s_branch {lp}")
        a.label(dn)
        a.e("s_lshl_b32 s54, s2, 7"); a.e(f"s_add_u32 s54, s54, {FL_LN}")
        self.flag_store("s54")
        self.wave0_end(lab)
    def feat(self, p, fp, fm, t):
        a = self.a
        P, E, M0, M1, S0, S1 = t, t + 8, t + 24, t + 25, t + 26, t + 27
        self.pack(E, p, 4); self.unpack(P, E, 4)
        a.e(f"v_max3_f32 v{M0}, v{P}, v{P+1}, v{P+2}"); a.e(f"v_min3_f32 v{M1}, v{P}, v{P+1}, v{P+2}")
        a.e(f"v_max3_f32 v{M0}, v{M0}, v{P+3}, v{P+4}"); a.e(f"v_min3_f32 v{M1}, v{M1}, v{P+3}, v{P+4}")
        a.e(f"v_max3_f32 v{M0}, v{M0}, v{P+5}, v{P+6}"); a.e(f"v_min3_f32 v{M1}, v{M1}, v{P+5}, v{P+6}")
        a.e(f"v_max_f32 v{M0}, v{M0}, v{P+7}"); a.e(f"v_max_f32 v{M1}, -v{M1}, -v{P+7}")
        a.e(f"v_permlane32_swap_b32 v{M0}, v{M1}"); a.e(f"v_max_f32 v{M0}, v{M0}, v{M1}")
        a.e(f"v_mul_f32 v{M0}, s94, v{M0}")
        a.e(f"v_mov_b32 v{M1}, v{M0}"); a.e(f"v_permlane32_swap_b32 v{M0}, v{M1}")
        for i in range(8):
            a.e(f"v_fma_f32 v{E+i}, v{P+i}, s94, -v{M0}"); a.e(f"v_fma_f32 v{E+8+i}, -v{P+i}, s94, -v{M1}")
        for i in range(16): a.e(f"v_exp_f32 v{E+i}, v{E+i}")
        a.e(f"v_add_f32 v{S0}, v{E}, v{E+1}"); a.e(f"v_add_f32 v{S1}, v{E+8}, v{E+9}")
        for i in range(2, 8):
            a.e(f"v_add_f32 v{S0}, v{S0}, v{E+i}"); a.e(f"v_add_f32 v{S1}, v{S1}, v{E+8+i}")
        a.e(f"v_permlane32_swap_b32 v{S0}, v{S1}"); a.e(f"v_add_f32 v{S0}, v{S0}, v{S1}")
        a.e(f"v_rcp_f32 v{S0}, v{S0}")
        a.e(f"v_mov_b32 v{S1}, v{S0}"); a.e(f"v_permlane32_swap_b32 v{S0}, v{S1}")
        for i in range(8):
            a.e(f"v_mul_f32 v{E+i}, v{E+i}, v{S0}"); a.e(f"v_mul_f32 v{E+8+i}, v{E+8+i}, v{S1}")
        self.pack(fp, E, 4); self.pack(fm, E + 8, 4)
    def role_a(self):
        a = self.a
        sTB, sHG, sTG, sHP = "s56", "s57", "s58", "s59"
        a.e(f"s_lshr_b32 {sTB}, {sG}, 1"); a.e(f"s_lshl_b32 {sTB}, {sTB}, 2"); a.e(f"s_and_b32 s54, {sJ}, 3"); a.e(f"s_add_u32 {sTB}, {sTB}, s54")
        a.e(f"s_and_b32 {sHG}, {sG}, 1"); a.e(f"s_lshl_b32 {sHG}, {sHG}, 2"); a.e(f"s_lshr_b32 s55, {sJ}, 2"); a.e(f"s_add_u32 {sHG}, {sHG}, s55")
        a.e(f"s_and_b32 {sTG}, {sW}, 3"); a.e(f"s_lshr_b32 {sHP}, {sW}, 2")
        a.e(f"s_mov_b32 s94, {f2h(LOG2E)}")
        a.e("v_lshrrev_b32 v2, 3, v1"); a.e("v_mul_u32_u24 v5, 3072, v2")
        a.e("v_bfe_u32 v2, v1, 4, 1"); a.e("v_lshlrev_b32 v2, 2, v2"); a.e("v_and_b32 v3, 7, v1"); a.e("v_xor_b32 v2, v2, v3")
        a.e("v_lshl_add_u32 v5, v2, 4, v5"); a.e(f"s_lshl_b32 s55, {sHG}, 7"); a.e("v_add_u32 v5, s55, v5")
        a.e("s_lshl_b32 s64, s54, 4"); a.e(f"s_add_u32 s64, s64, {sW}")
        def wdma(i, colofs, ldsbase, tag):
            a.e(f"s_add_u32 s65, s64, {8*i}"); a.e("s_and_b32 s65, s65, 63")
            a.e("s_mul_i32 s66, s65, 24576")
            if colofs: a.e(f"s_add_u32 s66, s66, {colofs}")
            a.e("s_lshl_b32 s65, s65, 10")
            a.e(f"s_add_u32 m0, s65, {ldsbase}")
            a.e(f"buffer_load_dwordx4 v5, {WQKV}, s66 offen lds", tag=tag)
        order = [(i, m) for i in range(8) for m in (0, 1)]
        def batch(lo, hi):
            for i, m in order[lo:hi]: wdma(i, 1024 + 1024 * m, 65536 * m, "wkv")
        batch(0, 4)
        self.ln_stage(lambda: batch(4, 8))
        batch(8, 16)
        a.e("v_bfe_u32 v2, v1, 4, 1"); a.e("v_lshlrev_b32 v2, 9, v2"); a.e("v_and_b32 v3, 15, v1"); a.e("v_lshl_add_u32 v2, v3, 1, v2")
        a.e("v_lshrrev_b32 v3, 5, v1"); a.e("v_lshl_add_u32 v2, v3, 7, v2")
        a.e(f"s_lshl_b32 s54, {sHG}, 11"); a.e(f"s_lshl_b32 s55, {sHP}, 10"); a.e("s_add_u32 s54, s54, s55")
        for jj in range(8):
            a.e(f"buffer_load_ushort v{40+jj}, v2, {WPHI}, s54 offen offset:{((jj>>2)*8 + (jj&3))*32}", tag="wphi")
        a.e("v_bfe_u32 v2, v1, 2, 2"); a.e("v_lshrrev_b32 v3, 5, v1"); a.e("v_lshl_add_u32 v4, v3, 3, v2"); a.e("v_lshlrev_b32 v60, 7, v4")
        a.e("v_lshrrev_b32 v2, 1, v2"); a.e(f"v_xor_b32 v2, {sHP}, v2"); a.e("v_lshl_add_u32 v60, v2, 6, v60")
        a.e("v_bfe_u32 v2, v1, 4, 1"); a.e("v_lshl_add_u32 v60, v2, 5, v60"); a.e("v_and_b32 v2, 3, v1"); a.e("v_lshl_add_u32 v60, v2, 3, v60")
        a.e("v_add_u32 v61, 0x10000, v60")
        a.wait(v=("wphi",))
        for i in range(4): a.e(f"v_lshl_or_b32 v{48+i}, v{41+2*i}, 16, v{40+2*i}")
        a.e("v_and_b32 v2, 16, v1"); a.e("v_cmp_eq_u32 vcc, 0, v2")
        for i in range(4):
            a.e(f"v_cndmask_b32 v{52+i}, v{48+i}, 0, vcc") if False else None
        for i in range(4):
            a.e(f"v_cndmask_b32 v{52+i}, v{48+i}, v62, vcc") if False else None
        a.e("v_mov_b32 v62, 0")
        for i in range(4): a.e(f"v_cndmask_b32 v{52+i}, v{48+i}, v62, vcc")
        for i in range(4): a.e(f"v_cndmask_b32 v{48+i}, v62, v{48+i}, vcc")
        lab = self.wave0_begin()
        a.e("v_and_b32 v2, 15, v1"); a.e(f"s_lshl_b32 s54, {sTB}, 4"); a.e("v_add_u32 v2, s54, v2")
        a.e(f"s_add_u32 s54, {sHG}, 248"); a.e("v_mov_b32 v3, s54"); a.e("v_cmp_gt_u32 vcc, 16, v1"); a.e("v_cndmask_b32 v2, v3, v2, vcc")
        a.e("v_lshlrev_b32 v58, 7, v2"); a.e(f"v_add_u32 v58, {FL_LN}, v58")
        self.poll("v58")
        self.wave0_end(lab)
        a.e("s_waitcnt vmcnt(0)"); a.e("s_barrier")
        self.stamp(4)
        XR, AK, AV, WF = 128, 64, 80, 96
        a.e(f"s_lshl_b32 s54, {sTB}, 2"); a.e(f"s_add_u32 s54, s54, {sTG}"); a.e("s_lshl_b32 s60, s54, 15")
        if XN_OFF: a.e(f"s_add_u32 s60, s60, {XN_OFF}")
        def xload(k):
            if k % 4 == 0 and k: a.e("s_add_u32 s60, s60, 4096")
            a.e(f"buffer_load_dwordx4 v[{XR+4*k}:{XR+4*k+3}], v6, {WS}, s60 offen offset:{(k%4)*1024} sc1", tag=f"xn{k}")
        def wread(k, both=True):
            b = WF + 8 * (k % 3)
            a.e(f"ds_read_b64_tr_b16 v[{b}:{b+1}], v60 offset:{k*2048}", tag=f"w{k}")
            a.e(f"ds_read_b64_tr_b16 v[{b+2}:{b+3}], v60 offset:{k*2048+512}", tag=f"w{k}")
            a.e(f"ds_read_b64_tr_b16 v[{b+4}:{b+5}], v61 offset:{k*2048}", tag=f"w{k}")
            a.e(f"ds_read_b64_tr_b16 v[{b+6}:{b+7}], v61 offset:{k*2048+512}", tag=f"w{k}")
        PF = 8
        for k in range(PF): xload(k)
        wread(0); wread(1)
        for k in range(32):
            if k + PF < 32: xload(k + PF)
            if k + 2 < 32: wread(k + 2)
            a.wait(v=(f"xn{k}",), l=(f"w{k}",))
            b = WF + 8 * (k % 3)
            c = "0" if k == 0 else None
            a.e(f"v_mfma_f32_32x32x16_bf16 v[{AK}:{AK+15}], v[{b}:{b+3}], v[{XR+4*k}:{XR+4*k+3}], " + (c or f"v[{AK}:{AK+15}]"))
            a.e(f"v_mfma_f32_32x32x16_bf16 v[{AV}:{AV+15}], v[{b+4}:{b+7}], v[{XR+4*k}:{XR+4*k+3}], " + (c or f"v[{AV}:{AV+15}]"))
        self.stamp(5)
        def features(acc, out):
            self.pack(96, acc, 8)
            a.e(f"v_mfma_f32_32x32x16_bf16 v[104:119], v[48:51], v[96:99], 0")
            a.e(f"v_mfma_f32_32x32x16_bf16 v[104:119], v[52:55], v[100:103], v[104:119]")
            self.feat(104, out, out + 4, 8)
            self.feat(112, out + 8, out + 12, 8)
        features(AK, 64)
        self.pack(96, AV, 8)
        a.e("v_and_b32 v2, 31, v1"); a.e("v_bfe_u32 v3, v1, 1, 3"); a.e("v_lshrrev_b32 v4, 5, v1"); a.e("v_xor_b32 v3, v3, v4")
        a.e(f"s_lshl_b32 s54, {sTG}, 11"); a.e("v_lshlrev_b32 v2, 6, v2"); a.e("v_add_u32 v2, s54, v2")
        for q in range(4):
            a.e(f"v_xor_b32 v4, {2*q}, v3"); a.e(f"v_lshl_add_u32 v{8+q}, v4, 3, v2")
        a.e(f"s_lshl_b32 s54, {sHP}, 14")
        a.e(f"s_lshl_b32 s55, {sHP}, 13"); a.e("s_add_u32 s55, s55, 32768")
        for q in range(4):
            a.e(f"v_add_u32 v{12+q}, s55, v{8+q}"); a.e(f"v_add_u32 v{8+q}, s54, v{8+q}")
        a.e("s_barrier")
        for hh in range(2):
            for q in range(4):
                a.e(f"ds_write_b64 v{8+q}, v[{64+8*hh+2*q}:{65+8*hh+2*q}] offset:{hh*8192}")
        for q in range(4):
            a.e(f"ds_write_b64 v{12+q}, v[{96+2*q}:{97+2*q}]")
        for i in range(8): wdma(i, 0, 65536, "wq")
        a.e("s_waitcnt lgkmcnt(0)"); a.e("s_barrier")
        self.stamp(6)
        lab = a.newlabel("Lkv")
        a.e(f"s_cmp_gt_u32 {sW}, 3"); a.e(f"s_cbranch_scc1 {lab}"); a.track = False
        a.e("v_bfe_u32 v2, v1, 2, 2"); a.e("v_lshrrev_b32 v3, 5, v1"); a.e("v_lshl_add_u32 v4, v3, 3, v2")
        a.e("v_lshrrev_b32 v16, 1, v4")
        a.e("v_lshlrev_b32 v4, 6, v4")
        a.e("v_and_b32 v17, 3, v1"); a.e("v_bfe_u32 v18, v1, 4, 1"); a.e("v_lshl_add_u32 v18, v18, 2, v17")
        a.e(f"s_and_b32 s54, {sW}, 1"); a.e("s_lshl_b32 s54, s54, 2"); a.e("v_add_u32 v17, s54, v17")
        a.e(f"s_lshl_b32 s54, {sW}, 13"); a.e(f"s_lshr_b32 s55, {sW}, 1"); a.e("s_lshl_b32 s55, s55, 13"); a.e("s_add_u32 s55, s55, 32768")
        for sec in range(2):
            a.e(f"v_xor_b32 v19, v18, v16"); a.e(f"v_xor_b32 v20, v17, v16")
            if sec: a.e("v_xor_b32 v19, 2, v19"); a.e("v_xor_b32 v20, 2, v20")
            a.e(f"v_lshl_add_u32 v{22+sec}, v19, 3, v4"); a.e(f"v_add_u32 v{22+sec}, s54, v{22+sec}")
            a.e(f"v_lshl_add_u32 v{24+sec}, v20, 3, v4"); a.e(f"v_add_u32 v{24+sec}, s55, v{24+sec}")
        a.e("v_and_b32 v2, 16, v1"); a.e("v_cmp_eq_u32 vcc, 0, v2"); a.e("v_mov_b32 v26, 0x3f803f80")
        for half in range(2):
            for ks in range(4):
                k = half * 4 + ks
                b = 64 + 8 * ks
                a.e(f"ds_read_b64_tr_b16 v[{b}:{b+1}], v24 offset:{k*1024}"); a.e(f"ds_read_b64_tr_b16 v[{b+2}:{b+3}], v25 offset:{k*1024+256}")
                a.e(f"ds_read_b64_tr_b16 v[{b+4}:{b+5}], v22 offset:{k*1024}"); a.e(f"ds_read_b64_tr_b16 v[{b+6}:{b+7}], v23 offset:{k*1024+256}")
            for ks in range(4):
                k = half * 4 + ks
                b = 64 + 8 * ks
                a.e(f"s_waitcnt lgkmcnt({12-4*ks})")
                for i in range(4): a.e(f"v_cndmask_b32 v{b+i}, v26, v{b+i}, vcc")
                a.e(f"v_mfma_f32_32x32x16_bf16 v[104:119], v[{b}:{b+3}], v[{b+4}:{b+7}], " + ("0" if k == 0 else "v[104:119]"))
        a.e("v_and_b32 v2, 31, v1"); a.e("v_lshlrev_b32 v2, 2, v2"); a.e("v_lshrrev_b32 v3, 5, v1"); a.e("v_lshl_add_u32 v2, v3, 9, v2")
        a.e(f"s_lshl_b32 s54, {sHG}, 14"); a.e(f"s_mul_i32 s55, {sW}, 2176"); a.e("s_add_u32 s54, s54, s55"); a.e(f"s_add_u32 s54, s54, {KV_OFF}")
        for r in range(8):
            a.e(f"buffer_atomic_add_f32 v{104+r}, v2, {WS}, s54 offen offset:{(8*(r>>2)+(r&3))*128} sc1")
        a.e("s_mov_b64 exec, 0xffffffff")
        a.e(f"buffer_atomic_add_f32 v112, v2, {WS}, s54 offen offset:2048 sc1")
        a.e("s_mov_b64 exec, -1")
        a.label(lab); a.track = True
        a.e("s_waitcnt vmcnt(0)"); a.e("s_barrier")
        self.stamp(7)
        lab = self.wave0_begin()
        a.e(f"s_lshl_b32 s54, {sTB}, 3"); a.e(f"s_add_u32 s54, s54, {sHG}"); a.e("s_lshl_b32 s54, s54, 7"); a.e(f"s_add_u32 s54, s54, {FL_KV}")
        self.flag_store("s54")
        self.wave0_end(lab)
        def qread(k):
            b = WF + 4 * (k % 4)
            a.e(f"ds_read_b64_tr_b16 v[{b}:{b+1}], v61 offset:{k*2048}", tag=f"w{k}")
            a.e(f"ds_read_b64_tr_b16 v[{b+2}:{b+3}], v61 offset:{k*2048+512}", tag=f"w{k}")
        for k in range(3): qread(k)
        for k in range(32):
            if k + 3 < 32: qread(k + 3)
            a.wait(l=(f"w{k}",))
            b = WF + 4 * (k % 4)
            a.e(f"v_mfma_f32_32x32x16_bf16 v[{AV}:{AV+15}], v[{b}:{b+3}], v[{XR+4*k}:{XR+4*k+3}], " + ("0" if k == 0 else f"v[{AV}:{AV+15}]"))
        features(AV, 64)
        self.stamp(8)
        lab = self.wave0_begin()
        a.e("v_and_b32 v2, 15, v1"); a.e("v_lshlrev_b32 v2, 3, v2"); a.e(f"v_add_u32 v2, {sHG}, v2")
        a.e("v_lshlrev_b32 v58, 7, v2"); a.e(f"v_add_u32 v58, {FL_KV}, v58")
        self.poll("v58")
        self.wave0_end(lab)
        a.e("s_barrier")
        self.stamp(9)
        a.e("v_and_b32 v2, 31, v1"); a.e("v_min_u32 v2, 16, v2"); a.e("v_lshlrev_b32 v2, 7, v2"); a.e("v_lshrrev_b32 v3, 5, v1"); a.e("v_lshl_add_u32 v2, v3, 4, v2")
        a.e(f"s_lshl_b32 s54, {sHG}, 14"); a.e(f"s_mul_i32 s55, {sHP}, 4352"); a.e("s_add_u32 s54, s54, s55"); a.e(f"s_add_u32 s54, s54, {KV_OFF}")
        for hh in range(2):
            for q in range(4):
                r = 128 + 16 * hh + 4 * q
                a.e(f"buffer_load_dwordx4 v[{r}:{r+3}], v2, {WS}, s54 offen offset:{hh*2176+q*32} sc1", tag=f"kv{hh}")
        a.e("v_bfe_u32 v3, v1, 4, 1"); a.e("v_lshlrev_b32 v3, 14, v3"); a.e("v_lshrrev_b32 v4, 5, v1"); a.e("v_lshl_add_u32 v3, v4, 8, v3")
        a.e("v_and_b32 v4, 15, v1"); a.e("v_lshl_add_u32 v3, v4, 4, v3")
        a.e(f"s_lshl_b32 s54, {sTB}, 2"); a.e(f"s_add_u32 s54, s54, {sTG}"); a.e("s_lshl_b32 s54, s54, 15")
        a.e(f"s_lshl_b32 s55, {sHG}, 1"); a.e(f"s_add_u32 s55, s55, {sHP}"); a.e("s_lshl_b32 s55, s55, 10"); a.e("s_add_u32 s54, s54, s55")
        a.e(f"s_add_u32 s54, s54, {OF_OFF}")
        for hh in range(2):
            a.wait(v=(f"kv{hh}",))
            self.pack(160 + 8 * hh, 128 + 16 * hh, 8)
            d = 176 + 16 * hh
            a.e(f"v_mfma_f32_32x32x16_bf16 v[{d}:{d+15}], v[{160+8*hh}:{163+8*hh}], v[{64+8*hh}:{67+8*hh}], 0")
            a.e(f"v_mfma_f32_32x32x16_bf16 v[{d}:{d+15}], v[{164+8*hh}:{167+8*hh}], v[{68+8*hh}:{71+8*hh}], v[{d}:{d+15}]")
        for hh in range(2):
            d = 176 + 16 * hh
            self.bf16r("v8", f"v{d+8}"); a.e(f"v_add_f32 v8, {f2h(1e-6)}, v8"); self.bf16r("v8", "v8"); a.e("v_rcp_f32 v8, v8")
            self.pack(12, d, 4); self.unpack(16, 12, 4)
            for i in range(8): a.e(f"v_mul_f32 v{16+i}, v{16+i}, v8")
            o = 24 + 4 * hh
            self.pack(o, 16, 4)
            a.e(f"buffer_store_dwordx4 v[{o}:{o+3}], v3, {WS}, s54 offen offset:{hh*512} sc1")
        a.e("s_waitcnt vmcnt(0)"); a.e("s_barrier")
        self.stamp(10)
        lab = self.wave0_begin()
        a.e(f"s_lshl_b32 s54, {sTB}, 3"); a.e(f"s_add_u32 s54, s54, {sHG}"); a.e("s_lshl_b32 s54, s54, 7"); a.e(f"s_add_u32 s54, s54, {FL_O}")
        self.flag_store("s54")
        self.wave0_end(lab)
    def role_b(self):
        a = self.a
        sDB, sFB, sKH, sDQ, sROT = "s56", "s57", "s58", "s59", "s51"
        a.e(f"s_and_b32 s54, {sG}, 3"); a.e("s_mul_i32 s54, s54, 15"); a.e(f"s_add_u32 s54, s54, {sJ}"); a.e("s_sub_u32 s54, s54, 16")
        a.e(f"s_lshr_b32 {sFB}, s54, 2"); a.e("s_and_b32 s55, s54, 3"); a.e(f"s_lshr_b32 {sDB}, {sG}, 2"); a.e(f"s_lshl_b32 {sDB}, {sDB}, 2"); a.e(f"s_add_u32 {sDB}, {sDB}, s55")
        a.e(f"s_lshl_b32 {sROT}, s55, 2"); a.e(f"s_add_u32 {sROT}, {sROT}, {sFB}")
        a.e(f"s_lshr_b32 {sKH}, {sW}, 2"); a.e(f"s_and_b32 {sDQ}, {sW}, 3")
        a.e(f"s_mul_i32 s54, {sW}, {16*2752}"); a.e(f"s_mul_i32 s55, {sFB}, 192"); a.e("s_add_u32 s54, s54, s55")
        for i in range(3):
            a.e(f"v_add_u32 v2, {64*i}, v1"); a.e("v_mul_u32_u24 v3, 5462, v2"); a.e("v_lshrrev_b32 v3, 16, v3")
            a.e("v_mul_u32_u24 v4, 12, v3"); a.e("v_sub_u32 v4, v2, v4")
            a.e("v_bfe_u32 v2, v3, 3, 1"); a.e("v_lshlrev_b32 v2, 1, v2"); a.e("v_xor_b32 v4, v4, v2")
            a.e(f"v_mul_u32_u24 v3, 2752, v3"); a.e(f"v_lshl_add_u32 v{60+i}, v4, 4, v3"); a.e(f"v_add_u32 v{60+i}, s54, v{60+i}")
        for x in range(192): assert (x * 5462) >> 16 == x // 12
        a.e(f"s_mul_i32 s64, {sW}, 3072")
        NS, SB = 6, 24576
        def dma(st):
            a.e(f"s_add_u32 s65, {sROT}, {st}"); a.e("s_and_b32 s65, s65, 15"); a.e(f"s_mul_i32 s65, s65, {128*2752}")
            for i in range(3):
                a.e(f"s_add_u32 m0, s64, {(st % NS)*SB + i*1024}")
                a.e(f"buffer_load_dwordx4 v{60+i}, {W1}, s65 offen lds", tag=f"d{st}")
        dma(0)
        self.ln_stage(lambda: dma(1))
        for st in range(2, NS): dma(st)
        a.e("v_lshrrev_b32 v2, 4, v1"); a.e("v_lshlrev_b32 v2, 3, v2"); a.e(f"s_mul_i32 s54, {sFB}, 192")
        for i in range(6):
            a.e(f"buffer_load_dwordx2 v[{100+2*i}:{101+2*i}], v2, {B1}, s54 offen offset:{32*i}", tag="b1")
        a.e("v_lshrrev_b32 v2, 4, v1"); a.e("v_bfe_u32 v3, v1, 2, 2"); a.e("v_lshl_add_u32 v3, v2, 3, v3"); a.e("v_mul_u32_u24 v3, 192, v3")
        a.e("v_and_b32 v4, 3, v1"); a.e("v_lshl_add_u32 v3, v4, 3, v3"); a.e(f"s_mul_i32 s54, {sKH}, {64*192}"); a.e("v_add_u32 v3, s54, v3")
        a.e("v_and_b32 v2, 1, v2"); a.e("v_lshlrev_b32 v2, 5, v2")
        a.e("v_add_u32 v64, v3, v2"); a.e("v_sub_u32 v65, v3, v2")
        for grp in (1, 2):
            a.e(f"v_add_u32 v{64+2*grp}, {grp*2*SB}, v64"); a.e(f"v_add_u32 v{65+2*grp}, {grp*2*SB}, v65")
        a.e(f"s_lshl_b32 s60, {sDB}, 2"); a.e(f"s_add_u32 s60, s60, {sDQ}"); a.e("s_lshl_b32 s60, s60, 16"); a.e(f"s_lshl_b32 s54, {sKH}, 11")
        a.e("s_add_u32 s60, s60, s54"); a.e(f"s_add_u32 s60, s60, {HF_OFF}")
        lab = self.wave0_begin()
        a.e("v_lshlrev_b32 v58, 7, v1"); a.e(f"v_add_u32 v58, {FL_LN}, v58")
        self.poll("v58", 4)
        self.wave0_end(lab)
        a.e("s_barrier")
        self.stamp(4)
        HB, WFB, ACC = 128, 160, 72
        def hload(st):
            a.e(f"s_add_u32 s66, {sROT}, {st}"); a.e("s_and_b32 s66, s66, 15"); a.e("s_lshl_b32 s66, s66, 12"); a.e("s_add_u32 s66, s66, s60")
            for ks in range(2):
                r = HB + 8 * (st % 4) + 4 * ks
                a.e(f"buffer_load_dwordx4 v[{r}:{r+3}], v6, {WS}, s66 offen offset:{ks*1024} sc1", tag=f"h{st}")
        def wread(st, ks, i):
            sl = st % NS
            base = 64 + 2 * (sl // 2) + (i & 1)
            off = (sl % 2) * SB + ks * 6144 + i * 32
            r = WFB + 24 * ks + 4 * i
            a.e(f"ds_read_b64_tr_b16 v[{r}:{r+1}], v{base} offset:{off}", tag=f"w{ks}{i}")
            a.e(f"ds_read_b64_tr_b16 v[{r+2}:{r+3}], v{base} offset:{off+768}", tag=f"w{ks}{i}")
        for st in range(3): hload(st)
        for st in range(16):
            a.wait(v=(f"d{st}",))
            a.e("s_barrier")
            for i in range(6): wread(st, 0, i)
            if st >= 1 and st + NS - 1 < 16: dma(st + NS - 1)
            if st + 3 < 16: hload(st + 3)
            a.wait(v=(f"h{st}",))
            for ks in range(2):
                for i in range(6):
                    a.wait(l=(f"w{ks}{i}",))
                    r = WFB + 24 * ks + 4 * i; h = HB + 8 * (st % 4) + 4 * ks; c = ACC + 4 * i
                    a.e(f"v_mfma_f32_16x16x32_bf16 v[{c}:{c+3}], v[{r}:{r+3}], v[{h}:{h+3}], " + ("0" if st == 0 and ks == 0 else f"v[{c}:{c+3}]"))
                    if ks == 0: wread(st, 1, i)
        self.stamp(5)
        a.e(f"s_mul_i32 s54, {sDQ}, 6144"); a.e(f"s_add_u32 s54, s54, {2*SB}"); a.e("v_add_u32 v2, s54, v6")
        a.e(f"s_lshl_b32 s60, {sDB}, 2"); a.e(f"s_add_u32 s60, s60, {sDQ}"); a.e(f"s_mul_i32 s60, s60, {UPITCH}"); a.e(f"s_mul_i32 s54, {sFB}, 3")
        a.e("s_add_u32 s60, s60, s54"); a.e("s_lshl_b32 s60, s60, 10"); a.e(f"s_add_u32 s60, s60, {UF_OFF}")
        c0 = -2.0 * math.sqrt(2.0 / math.pi) * LOG2E
        a.e(f"s_mov_b32 s94, {f2h(c0 * 0.044715)}"); a.e(f"v_mov_b32 v5, {f2h(c0)}")
        a.wait(v=("b1",))
        def unit(u):
            A = ACC + 8 * u; Pn = 128 + 8 * u
            for i in range(8): a.e(f"v_add_f32 v{A+i}, v{A+i}, v{Pn+i}")
            self.pack(8, A, 4); self.unpack(16, 8, 4); self.unpack(24, 100 + 4 * u, 4)
            for i in range(8): a.e(f"v_add_f32 v{16+i}, v{16+i}, v{24+i}")
            self.pack(8, 16, 4); self.unpack(16, 8, 4)
            for i in range(8): a.e(f"v_mul_f32 v{24+i}, v{16+i}, v{16+i}")
            for i in range(8): a.e(f"v_fma_f32 v{24+i}, v{24+i}, s94, v5")
            for i in range(8): a.e(f"v_mul_f32 v{24+i}, v{24+i}, v{16+i}")
            for i in range(8): a.e(f"v_exp_f32 v{24+i}, v{24+i}")
            for i in range(8): a.e(f"v_add_f32 v{24+i}, 1.0, v{24+i}")
            for i in range(8): a.e(f"v_rcp_f32 v{24+i}, v{24+i}")
            for i in range(8): a.e(f"v_mul_f32 v{24+i}, v{24+i}, v{16+i}")
            o = 32 + 4 * u
            self.pack(o, 24, 4)
            a.e(f"buffer_store_dwordx4 v[{o}:{o+3}], v6, {WS}, s60 offen offset:{u*1024} sc1")
        l1 = a.newlabel("Lk1"); l2 = a.newlabel("Lk2")
        a.e(f"s_cmp_lg_u32 {sKH}, 0"); a.e(f"s_cbranch_scc1 {l1}")
        a.track = False
        a.e("s_nop 7")
        for i in (4, 5): a.e(f"ds_write_b128 v2, v[{ACC+4*i}:{ACC+4*i+3}] offset:{i*1024}")
        a.e("s_waitcnt lgkmcnt(0)"); a.e("s_barrier")
        for i in range(4): a.e(f"ds_read_b128 v[{128+4*i}:{131+4*i}], v2 offset:{i*1024}")
        a.e("s_waitcnt lgkmcnt(0)")
        unit(0); unit(1)
        a.e(f"s_branch {l2}")
        a.label(l1)
        a.e("s_nop 7")
        for i in range(4): a.e(f"ds_write_b128 v2, v[{ACC+4*i}:{ACC+4*i+3}] offset:{i*1024}")
        a.e("s_waitcnt lgkmcnt(0)"); a.e("s_barrier")
        for i in (4, 5): a.e(f"ds_read_b128 v[{128+4*i}:{131+4*i}], v2 offset:{i*1024}")
        a.e("s_waitcnt lgkmcnt(0)")
        unit(2)
        a.label(l2)
        a.track = True
        a.e("s_waitcnt vmcnt(0)"); a.e("s_barrier")
        self.stamp(10)
        lab = self.wave0_begin()
        a.e(f"s_mul_i32 s54, {sDB}, 15"); a.e(f"s_add_u32 s54, s54, {sFB}"); a.e("s_lshl_b32 s54, s54, 7"); a.e(f"s_add_u32 s54, s54, {FL_U}")
        self.flag_store("s54")
        self.wave0_end(lab)
    def phase2(self):
        a = self.a
        a.vq = []; a.lq = []
        sDB, sTB, sKH, sDQ, sROT = "s56", "s57", "s58", "s59", "s51"
        a.e(f"s_lshr_b32 {sDB}, {sG}, 2"); a.e(f"s_lshl_b32 {sDB}, {sDB}, 2"); a.e(f"s_lshr_b32 s54, {sJ}, 3"); a.e(f"s_add_u32 {sDB}, {sDB}, s54")
        a.e(f"s_and_b32 {sTB}, {sG}, 3"); a.e(f"s_lshl_b32 {sTB}, {sTB}, 3"); a.e(f"s_and_b32 s55, {sJ}, 7"); a.e(f"s_add_u32 {sTB}, {sTB}, s55")
        a.e(f"s_mul_i32 {sROT}, s54, 3"); a.e(f"s_add_u32 {sROT}, {sROT}, s55")
        a.e(f"s_cmp_ge_u32 {sROT}, 11"); a.e("s_cselect_b32 s54, 11, 0"); a.e(f"s_sub_u32 {sROT}, {sROT}, s54")
        a.e(f"s_lshr_b32 {sKH}, {sW}, 2"); a.e(f"s_and_b32 {sDQ}, {sW}, 3")
        NS, SB = 9, 16384
        a.e("v_bfe_u32 v2, v1, 4, 2"); a.e("v_lshlrev_b32 v2, 1, v2"); a.e("v_and_b32 v3, 7, v1"); a.e("v_xor_b32 v2, v2, v3"); a.e("v_lshlrev_b32 v2, 4, v2")
        a.e("v_lshrrev_b32 v3, 3, v1")
        a.e("v_lshl_add_u32 v60, v3, 12, v2"); a.e(f"s_lshl_b32 s54, {sW}, 16"); a.e(f"s_lshl_b32 s55, {sTB}, 7"); a.e("s_add_u32 s54, s54, s55")
        a.e("v_add_u32 v60, s54, v60"); a.e("v_add_u32 v61, 0x8000, v60")
        a.e("v_lshl_add_u32 v62, v3, 10, v2"); a.e(f"s_lshr_b32 s54, {sW}, 1"); a.e("s_lshl_b32 s54, s54, 15"); a.e(f"s_and_b32 s55, {sW}, 1"); a.e("s_lshl_b32 s55, s55, 13")
        a.e("s_add_u32 s54, s54, s55"); a.e(f"s_lshl_b32 s55, {sDB}, 7"); a.e("s_add_u32 s54, s54, s55")
        a.e("v_add_u32 v62, s54, v62"); a.e("v_add_u32 v63, 0x4000, v62")
        a.e(f"s_lshl_b32 s64, {sW}, 11")
        def rot(dst, st):
            a.e(f"s_add_u32 {dst}, {sROT}, {st}"); a.e(f"s_cmp_ge_u32 {dst}, 11"); a.e("s_cselect_b32 s54, 11, 0"); a.e(f"s_sub_u32 {dst}, {dst}, s54")
        def dma(st):
            if st < 11:
                rot("s65", st); a.e("s_lshl_b32 s65, s65, 19")
                srd, vb = W2, 60
            else:
                a.e(f"s_mov_b32 s65, {(st-11)*131072}")
                srd, vb = WO, 62
            for i in range(2):
                a.e(f"s_add_u32 m0, s64, {(st % NS)*SB + i*1024}")
                a.e(f"buffer_load_dwordx4 v{vb+i}, {srd}, s65 offen lds", tag=f"d{st}")
        for st in range(NS): dma(st)
        a.e("v_lshrrev_b32 v2, 3, v0"); a.e("v_and_b32 v3, 7, v0"); a.e("v_lshlrev_b32 v56, 10, v2"); a.e("v_lshl_add_u32 v56, v3, 4, v56")
        a.e(f"s_lshl_b32 s67, {sTB}, 16"); a.e(f"s_lshl_b32 s54, {sDB}, 7"); a.e("s_add_u32 s67, s67, s54")
        a.e(f"buffer_load_dwordx4 v[48:51], v56, {X}, s67 offen", tag="xt")
        a.e("v_lshlrev_b32 v4, 1, v2"); a.e(f"s_lshl_b32 s54, {sTB}, 7")
        a.e(f"buffer_load_ushort v52, v4, {B2}, s54 offen", tag="xt")
        a.e("v_mul_u32_u24 v57, 272, v2"); a.e("v_lshl_add_u32 v57, v3, 5, v57")
        a.e("v_lshrrev_b32 v2, 2, v1"); a.e("v_bfe_u32 v3, v2, 1, 2"); a.e("v_lshlrev_b32 v2, 7, v2"); a.e("v_and_b32 v4, 3, v1"); a.e("v_lshl_add_u32 v2, v4, 3, v2")
        a.e(f"s_lshl_b32 s54, {sKH}, 13"); a.e("v_add_u32 v2, s54, v2")
        for i in range(4):
            a.e(f"v_xor_b32 v4, {i}, v3"); a.e(f"v_lshl_add_u32 v{64+i}, v4, 5, v2")
            for grp in (1, 2): a.e(f"v_add_u32 v{64+4*grp+i}, {grp*3*SB}, v{64+i}")
        a.e(f"s_lshl_b32 s60, {sDB}, 2"); a.e(f"s_add_u32 s60, s60, {sDQ}"); a.e(f"s_mul_i32 s60, s60, {UPITCH*1024}"); a.e(f"s_lshl_b32 s54, {sKH}, 11")
        a.e("s_add_u32 s60, s60, s54"); a.e(f"s_add_u32 s60, s60, {UF_OFF}")
        a.e(f"s_lshl_b32 s61, {sTB}, 2"); a.e(f"s_add_u32 s61, s61, {sDQ}"); a.e("s_lshl_b32 s61, s61, 14"); a.e("s_add_u32 s61, s61, s54"); a.e(f"s_add_u32 s61, s61, {OF_OFF}")
        a.e("v_and_b32 v2, 15, v1"); a.e("v_mul_u32_u24 v2, 272, v2"); a.e("v_lshrrev_b32 v3, 4, v1"); a.e("v_lshl_add_u32 v2, v3, 4, v2")
        a.e(f"s_mul_i32 s54, {sKH}, 17408"); a.e(f"s_lshl_b32 s55, {sDQ}, 6"); a.e("s_add_u32 s55, s55, s54"); a.e("v_add_u32 v54, s55, v2")
        a.e(f"s_mul_i32 s55, {sDQ}, 4352"); a.e("s_add_u32 s55, s55, s54"); a.e("s_add_u32 s55, s55, 34816"); a.e("v_add_u32 v55, s55, v2")
        self.stamp(11)
        lab = self.wave0_begin()
        a.e("v_min_u32 v2, 14, v1"); a.e(f"s_mul_i32 s54, {sDB}, 15"); a.e("v_add_u32 v2, s54, v2"); a.e("v_lshlrev_b32 v2, 7, v2"); a.e(f"v_add_u32 v2, {FL_U}, v2")
        a.e("v_and_b32 v3, 7, v1"); a.e(f"s_lshr_b32 s54, {sTB}, 1"); a.e("s_lshl_b32 s54, s54, 3"); a.e("v_add_u32 v3, s54, v3"); a.e("v_lshlrev_b32 v3, 7, v3"); a.e(f"v_add_u32 v3, {FL_O}, v3")
        a.e("v_cmp_gt_u32 vcc, 16, v1"); a.e("v_cndmask_b32 v58, v3, v2, vcc")
        self.poll("v58")
        self.wave0_end(lab)
        a.e("s_barrier")
        self.stamp(12)
        PB, WFB, AY, AS = 128, 160, 80, 96
        def pload(st):
            if st < 11:
                rot("s66", st); a.e("s_lshl_b32 s66, s66, 12"); a.e("s_add_u32 s66, s66, s60")
            else:
                a.e(f"s_add_u32 s66, s61, {(st-11)*4096}")
            for ks in range(2):
                r = PB + 8 * (st % 4) + 4 * ks
                a.e(f"buffer_load_dwordx4 v[{r}:{r+3}], v6, {WS}, s66 offen offset:{ks*1024} sc1", tag=f"p{st}")
        def wread(st, ks, i):
            sl = st % NS
            base = 64 + 4 * (sl // 3) + i
            off = (sl % 3) * SB + ks * 4096
            r = WFB + 16 * ks + 4 * i
            a.e(f"ds_read_b64_tr_b16 v[{r}:{r+1}], v{base} offset:{off}", tag=f"w{ks}{i}")
            a.e(f"ds_read_b64_tr_b16 v[{r+2}:{r+3}], v{base} offset:{off+2048}", tag=f"w{ks}{i}")
        for st in range(3): pload(st)
        for st in range(15):
            a.wait(v=(f"d{st}",))
            a.e("s_barrier")
            for i in range(4): wread(st, 0, i)
            if st >= 1 and st + NS - 1 < 15: dma(st + NS - 1)
            if st + 3 < 15: pload(st + 3)
            a.wait(v=(f"p{st}",))
            for ks in range(2):
                for i in range(4):
                    a.wait(l=(f"w{ks}{i}",))
                    r = WFB + 16 * ks + 4 * i; p = PB + 8 * (st % 4) + 4 * ks
                    if st < 11:
                        c = AY + 4 * i
                        a.e(f"v_mfma_f32_16x16x32_bf16 v[{c}:{c+3}], v[{p}:{p+3}], v[{r}:{r+3}], " + ("0" if st == 0 and ks == 0 else f"v[{c}:{c+3}]"))
                    else:
                        c = AS + 4 * i
                        a.e(f"v_mfma_f32_16x16x32_bf16 v[{c}:{c+3}], v[{r}:{r+3}], v[{p}:{p+3}], " + ("0" if st == 11 and ks == 0 else f"v[{c}:{c+3}]"))
                    if ks == 0: wread(st, 1, i)
        self.stamp(13)
        for i in range(4): a.e(f"ds_write_b128 v54, v[{AY+4*i}:{AY+4*i+3}] offset:{i*4352}")
        for i in range(4): a.e(f"ds_write_b128 v55, v[{AS+4*i}:{AS+4*i+3}] offset:{i*64}")
        a.e(f"s_mov_b32 s94, {f2h(-LOG2E)}")
        a.e("s_waitcnt lgkmcnt(0)"); a.e("s_barrier")
        for arr in range(4):
            for hf in range(2):
                r = 128 + 8 * arr + 4 * hf
                a.e(f"ds_read_b128 v[{r}:{r+3}], v57 offset:{arr*17408+hf*16}")
        a.wait(v=("xt",))
        a.e("v_lshlrev_b32 v52, 16, v52")
        self.unpack(40, 48, 4)
        a.e("s_waitcnt lgkmcnt(4)")
        for i in range(8): a.e(f"v_add_f32 v{128+i}, v{128+i}, v{136+i}")
        self.pack(8, 128, 4); self.unpack(16, 8, 4)
        for i in range(8): a.e(f"v_add_f32 v{16+i}, v{16+i}, v52")
        self.pack(8, 16, 4); self.unpack(16, 8, 4)
        for i in range(8): a.e(f"v_mul_f32 v{24+i}, s94, v{16+i}")
        for i in range(8): a.e(f"v_exp_f32 v{24+i}, v{24+i}")
        for i in range(8): a.e(f"v_add_f32 v{24+i}, 1.0, v{24+i}")
        for i in range(8): a.e(f"v_rcp_f32 v{24+i}, v{24+i}")
        for i in range(8): a.e(f"v_mul_f32 v{24+i}, v{24+i}, v{16+i}")
        self.pack(8, 24, 4); self.unpack(24, 8, 4)
        a.e("s_waitcnt lgkmcnt(0)")
        for i in range(8): a.e(f"v_add_f32 v{144+i}, v{144+i}, v{152+i}")
        self.pack(8, 144, 4); self.unpack(16, 8, 4)
        for i in range(8): a.e(f"v_mul_f32 v{16+i}, v{16+i}, v{24+i}")
        self.pack(8, 16, 4); self.unpack(16, 8, 4)
        for i in range(8): a.e(f"v_add_f32 v{16+i}, v{16+i}, v{40+i}")
        self.pack(8, 16, 4)
        a.e(f"buffer_store_dwordx4 v[8:11], v56, {OUT}, s67 offen")
        if self.stamps:
            a.e("s_waitcnt vmcnt(0)")
            self.stamp(14)
            lab = self.wave0_begin()
            a.e("v_lshlrev_b32 v2, 2, v1"); a.e("s_lshl_b32 s54, s2, 8"); a.e(f"s_add_u32 s54, s54, {STAMP_OFF}")
            a.e(f"buffer_store_dword v7, v2, {WS}, s54 offen")
            self.wave0_end(lab)
    def build(self):
        a = self.a
        a.raw(HDR.rstrip())
        a.raw(f"; @launch grid=(256,1,1) block=(512,1,1) lds={LDS_BYTES}")
        a.raw('.amdgcn_target "amdgcn-amd-amdhsa--gfx950"'); a.raw(".text"); a.raw(f".globl {NAME}_kernel"); a.raw(".p2align 8")
        a.raw(f".type {NAME}_kernel,@function"); a.label(f"{NAME}_kernel")
        self.prologue()
        q0 = list(a.vq)
        a.e(f"s_cmp_lt_u32 {sJ}, 16"); a.e("s_cbranch_scc1 L_roleA")
        a.e(f"s_cmp_lt_u32 {sJ}, 31"); a.e("s_cbranch_scc1 L_roleB")
        self.ln_stage(lambda: None, kvzero=True)
        a.e("s_branch L_phase2")
        a.label("L_roleA"); a.vq = list(q0); a.lq = []
        self.role_a()
        a.e("s_branch L_phase2")
        a.label("L_roleB"); a.vq = list(q0); a.lq = []
        self.role_b()
        a.label("L_phase2")
        a.e("s_nop 1")
        self.phase2()
        a.label("L_end")
        a.e("s_endpgm")
        a.raw('.section .rodata,"a"'); a.raw(".p2align 6"); a.raw(f".amdhsa_kernel {NAME}_kernel")
        for l in ("next_free_vgpr 256", "next_free_sgpr 102", "accum_offset 256", "group_segment_fixed_size 0", "kernarg_size 96",
                  "user_sgpr_count 2", "user_sgpr_kernarg_segment_ptr 1", "system_sgpr_workgroup_id_x 1", "float_denorm_mode_32 3"):
            a.raw("  .amdhsa_" + l)
        a.raw(".end_amdhsa_kernel")
        return a.render()

if __name__ == "__main__":
    stamps = "--stamps" in sys.argv
    out = [x for x in sys.argv[1:] if not x.startswith("--")]
    g = G(stamps)
    txt = g.build()
    open(out[0] if out else "k.s", "w").write(txt)
    print("lines", txt.count("\n"), "nops", g.a.nops)
```

```python
import sys, math, os, struct
from asmlib import Asm

NAME = "recurrent_scan__linear_kernel_hedgehog__mixer_token_mlp__prompt"
HDR = open("cdna_kernels/" + NAME + ".s.ref").read().split("; Override launch geometry")[0]

HF_OFF, OF_OFF, UF_OFF, KV_OFF, FL_OFF, ST_OFF, STAMP_OFF = 0x200000, 0x400000, 0x600000, 0x880000, 0x820000, 0x840000, 0x900000
KVZ_OFF = KV_OFF
FL_LN, FL_KV, FL_O, FL_U = FL_OFF, FL_OFF + 0x8000, FL_OFF + 0xC000, FL_OFF + 0x10000
WS_SIZE = 0x1000000
UPITCH = 90
LDS_BYTES = 163840
X, WQKV, WPHI, WO, W1, B1, W2, B2, OUT, DBG, WS = [f"s[{i}:{i+3}]" for i in range(4, 48, 4)]
SRD_SIZES = [2097152, 1572864, 16384, 524288, 5636096, 2752, 5636096, 4096, 2097152, 256, WS_SIZE]
SRD_PTR = [64, 66, 68, 70, 74, 76, 78, 80, 82, 84, 86]
sW, sG, sJ = "s48", "s49", "s50"
sN0, sN1, sNON = "s52", "s53", "s[52:53]"
LOG2E = 1.4426950408889634
SPIN_MAX = 20000
SLEEP = int(os.environ.get("SLEEP", "1"))
FINE = int(os.environ.get("FINE", "0"))
CODEPF = int(os.environ.get("CODEPF", "1"))

def f2h(x): return "0x%08x" % struct.unpack("<I", struct.pack("<f", x))[0]

class G:
    def __init__(self, stamps=False):
        self.a = Asm(); self.stamps = stamps
    def stamp(self, idx, fine=False):
        if not self.stamps or (fine and not FINE): return
        a = self.a
        a.e("s_memrealtime s[98:99]"); a.e("s_waitcnt lgkmcnt(0)"); a.e(f"v_writelane_b32 v7, s98, {idx}")
    def capture(self, fn):
        a = self.a; out = []
        save = a.e
        a.e = lambda s, tag=None: out.append((s, tag))
        fn()
        a.e = save
        return out
    def unpack(self, dst0, src0, n):
        for i in range(n):
            self.a.e(f"v_lshlrev_b32 v{dst0+2*i}, 16, v{src0+i}")
            self.a.e(f"v_and_b32 v{dst0+2*i+1}, 0xffff0000, v{src0+i}")
    def pack(self, dst0, src0, n):
        for i in range(n):
            self.a.e(f"v_cvt_pk_bf16_f32 v{dst0+i}, v{src0+2*i}, v{src0+2*i+1}")
    def wave0_begin(self):
        a = self.a; lab = a.newlabel("Lw0")
        a.e(f"s_cmp_lg_u32 {sW}, 0"); a.e(f"s_cbranch_scc1 {lab}"); self._tr = a.track; a.track = False
        return lab
    def wave0_end(self, lab):
        self.a.label(lab); self.a.track = self._tr
    def flag_store(self, soff_reg, t=2):
        a = self.a
        lab = self.wave0_begin()
        a.e(f"v_mov_b32 v{t}, {sN0}"); a.e(f"v_mov_b32 v{t+1}, {sN1}"); a.e(f"v_mov_b32 v{t+2}, 0")
        a.e("s_mov_b64 exec, 1")
        a.e(f"buffer_store_dwordx2 v[{t}:{t+1}], v{t+2}, {WS}, {soff_reg} offen sc1")
        a.e("s_mov_b64 exec, -1")
        self.wave0_end(lab)
    def poll(self, vaddr, tmp=8):
        a = self.a; lp = a.newlabel("Lpoll"); dn = a.newlabel("Lpd")
        tr = a.track; a.track = False
        a.e("s_mov_b32 s96, 0")
        a.label(lp)
        a.e(f"buffer_load_dwordx2 v[{tmp}:{tmp+1}], {vaddr}, {WS}, 0 offen sc1")
        a.e("s_waitcnt vmcnt(0)")
        a.e(f"v_cmp_ne_u64 vcc, {sNON}, v[{tmp}:{tmp+1}]")
        a.e("s_add_u32 s96, s96, 1")
        a.e("s_cmp_eq_u64 vcc, 0"); a.e(f"s_cbranch_scc1 {dn}")
        a.e(f"s_cmp_gt_u32 s96, {SPIN_MAX}"); a.e(f"s_cbranch_scc1 {dn}")
        a.e(f"s_sleep {SLEEP}"); a.e(f"s_branch {lp}")
        a.label(dn)
        a.track = tr
    def poll_issue(self, vaddr, tmp, tag):
        self.a.e(f"buffer_load_dwordx2 v[{tmp}:{tmp+1}], {vaddr}, {WS}, 0 offen sc1", tag=tag)
    def poll_check(self, vaddr, tmp, tag):
        a = self.a; ok = a.newlabel("Lok")
        a.wait(v=(tag,))
        a.e(f"v_cmp_ne_u64 vcc, {sNON}, v[{tmp}:{tmp+1}]")
        a.e("s_cmp_eq_u64 vcc, 0"); a.e(f"s_cbranch_scc1 {ok}")
        self.poll(vaddr, tmp=tmp)
        a.label(ok)
    def nonce_issue(self, tmp, z):
        self.a.e(f"v_mov_b32 v{z}, 0")
        self.a.e(f"buffer_load_dwordx2 v[{tmp}:{tmp+1}], v{z}, {DBG}, 0 offen sc1", tag="nonce")
    def nonce_get(self, tmp, z):
        a = self.a
        a.wait(v=("nonce",))
        lp = a.newlabel("Lnp"); dn = a.newlabel("Lnd")
        tr = a.track; a.track = False
        a.e("s_mov_b32 s96, 0")
        a.label(lp)
        a.e(f"v_readfirstlane_b32 {sN0}, v{tmp}"); a.e(f"v_readfirstlane_b32 {sN1}, v{tmp+1}")
        a.e(f"s_cmp_lg_u32 {sN1}, 0"); a.e(f"s_cbranch_scc1 {dn}")
        a.e("s_add_u32 s96, s96, 1"); a.e(f"s_cmp_gt_u32 s96, {SPIN_MAX}"); a.e(f"s_cbranch_scc1 {dn}")
        a.e("s_sleep 1")
        a.e(f"buffer_load_dwordx2 v[{tmp}:{tmp+1}], v{z}, {DBG}, 0 offen sc1"); a.e("s_waitcnt vmcnt(0)")
        a.e(f"s_branch {lp}")
        a.label(dn)
        a.track = tr
    def prologue(self):
        a = self.a
        a.e("s_cmp_ge_u32 s2, 256"); a.e("s_cbranch_scc1 L_end")
        a.e("s_load_dwordx16 s[64:79], s[0:1], 0"); a.e("s_load_dwordx8 s[80:87], s[0:1], 64")
        a.e("s_memrealtime s[92:93]")
        a.e("v_and_b32 v1, 63, v0"); a.e("v_lshrrev_b32 v2, 6, v0"); a.e(f"v_readfirstlane_b32 {sW}, v2")
        a.e("v_lshlrev_b32 v6, 4, v1")
        if CODEPF:
            a.e("s_getpc_b64 s[88:89]")
            a.label("L_pc")
            a.e("s_bfe_u32 s54, s2, 0x30003"); a.e("s_lshl_b32 s54, s54, 13")
            a.e("v_lshlrev_b32 v2, 10, v2"); a.e("v_lshl_add_u32 v2, v1, 7, v2"); a.e("v_add_u32 v2, s54, v2")
            a.e("v_min_u32 v2, L_end-L_pc, v2")
            a.e("v_mov_b32 v3, s89"); a.e("v_add_co_u32 v2, vcc, s88, v2"); a.e("v_addc_co_u32 v3, vcc, 0, v3, vcc")
            a.e("s_mov_b64 exec, 0xff")
            a.e("global_load_dword v255, v[2:3], off", tag="cpf")
            a.e("s_mov_b64 exec, -1")
        a.e(f"s_and_b32 {sG}, s2, 7"); a.e(f"s_lshr_b32 {sJ}, s2, 3")
        for i, sz in enumerate(SRD_SIZES):
            a.e(f"s_mov_b32 s{4+4*i+2}, {sz}"); a.e(f"s_mov_b32 s{4+4*i+3}, 0x20000")
        a.e("s_waitcnt lgkmcnt(0)")
        if self.stamps:
            a.e("v_mov_b32 v7, 0"); a.e("v_writelane_b32 v7, s92, 0")
        a.e("s_mov_b64 s[40:41], s[84:85]")
        lab = a.newlabel("Lnon")
        a.e(f"s_or_b32 s54, s2, {sW}"); a.e("s_cmp_lg_u32 s54, 0"); a.e(f"s_cbranch_scc1 {lab}")
        a.track = False
        a.e("s_or_b32 s93, s93, 0x40000000")
        a.e("v_mov_b32 v2, s92"); a.e("v_mov_b32 v3, s93"); a.e("v_mov_b32 v4, 0")
        a.e("s_mov_b64 exec, 1")
        a.e(f"buffer_store_dwordx2 v[2:3], v4, {DBG}, 0 offen sc1")
        a.e("s_mov_b64 exec, -1")
        a.track = True
        a.label(lab)
        for i, p in enumerate(SRD_PTR):
            if i != 9: a.e(f"s_mov_b64 s[{4+4*i}:{5+4*i}], s[{p}:{p+1}]")
    def ln_block(self, mid):
        a = self.a
        LH = 131072
        R = (16, 20)
        a.e(f"s_mul_i32 s54, {sW}, 1088"); a.e(f"s_add_u32 s54, s54, {LH}"); a.e("v_add_u32 v24, s54, v6")
        a.e("v_bfe_u32 v25, v1, 2, 2"); a.e("v_lshrrev_b32 v26, 5, v1"); a.e("v_lshl_add_u32 v25, v26, 3, v25"); a.e("v_mul_u32_u24 v25, 1088, v25")
        a.e("v_bfe_u32 v27, v1, 4, 1"); a.e("v_lshl_add_u32 v25, v27, 5, v25"); a.e("v_and_b32 v26, 3, v1"); a.e("v_lshl_add_u32 v25, v26, 3, v25")
        a.e(f"s_lshl_b32 s54, {sW}, 7"); a.e(f"s_add_u32 s54, s54, {LH}"); a.e("v_add_u32 v25, s54, v25")
        a.e("v_mov_b32 v27, v6")
        a.e("s_lshl_b32 s63, s62, 10"); a.e(f"s_lshl_b32 s54, {sW}, 18"); a.e("s_add_u32 s63, s63, s54"); a.e(f"s_add_u32 s63, s63, {HF_OFF}")
        a.e("s_add_u32 s61, s63, 0x20000")
        a.e("s_lshl_b32 s60, s62, 7"); a.e(f"s_lshl_b32 s54, {sW}, 3"); a.e("s_add_u32 s60, s60, s54"); a.e(f"s_add_u32 s60, s60, {ST_OFF}")
        a.e(f"v_mov_b32 v28, {f2h(1e-5)}")
        a.wait(v=("xrow",))
        self.stamp(1)
        self.nonce_issue(58, 4)
        T = (32, 40); S1 = (48, 50); S2 = (49, 51)
        for r in range(2): self.unpack(T[r], R[r], 4)
        for r in range(2): a.e(f"v_readfirstlane_b32 s{90+r}, v{T[r]}")
        for r in range(2): a.e(f"v_mov_b32 v{29+r}, s{90+r}")
        for i in range(8):
            for r in range(2): a.e(f"v_sub_f32 v{T[r]+i}, v{T[r]+i}, v{29+r}")
        for r in range(2):
            a.e(f"v_add_f32 v{S1[r]}, v{T[r]}, v{T[r]+1}"); a.e(f"v_mul_f32 v{S2[r]}, v{T[r]}, v{T[r]}")
        for i in range(1, 8):
            for r in range(2):
                if i >= 2: a.e(f"v_add_f32 v{S1[r]}, v{S1[r]}, v{T[r]+i}")
                a.e(f"v_fmac_f32 v{S2[r]}, v{T[r]+i}, v{T[r]+i}")
        a.e("v_permlane16_swap_b32 v48, v49"); a.e("v_permlane16_swap_b32 v50, v51")
        a.e("v_add_f32 v48, v48, v49"); a.e("v_add_f32 v50, v50, v51")
        a.e("v_permlane32_swap_b32 v48, v50"); a.e("v_add_f32 v48, v48, v50")
        for ctl in ("quad_perm:[1,0,3,2]", "quad_perm:[2,3,0,1]", "row_half_mirror", "row_mirror"):
            a.e(f"v_add_f32_dpp v48, v48, v48 {ctl} row_mask:0xf bank_mask:0xf")
        a.e("v_mul_f32 v48, 0x3b000000, v48")
        for q in range(4): a.e(f"v_readlane_b32 s{92+q}, v48, {16*q}")
        for r in range(2):
            b = 48 + 5 * r
            a.e(f"v_mov_b32 v{b}, s{92+2*r}")
            a.e(f"v_fma_f32 v{b+1}, -v{b}, v{b}, s{93+2*r}"); a.e(f"v_max_f32 v{b+1}, 0, v{b+1}")
            a.e(f"v_add_f32 v{b+2}, v28, v{b+1}"); a.e(f"v_fmac_f32 v{b+1}, v{b+2}, v28")
        for r in range(2):
            b = 48 + 5 * r
            a.e(f"v_rsq_f32 v{b+1}, v{b+1}")
        for r in range(2):
            b = 48 + 5 * r
            a.e(f"v_rsq_f32 v{17+2*r}, v{b+2}"); a.e(f"v_add_f32 v{16+2*r}, v{29+r}, v{b}"); a.e(f"v_mul_f32 v{b}, v{b}, v{b+1}")
        for r in range(2):
            b = 48 + 5 * r
            for i in range(8): a.e(f"v_fma_f32 v{T[r]+i}, v{T[r]+i}, v{b+1}, -v{b}")
            self.pack(T[r], T[r], 4)
            a.e(f"ds_write_b128 v24, v[{T[r]}:{T[r]+3}] offset:{r*8*1088}")
        a.e("s_mov_b64 exec, 1")
        for r in range(2): a.e(f"buffer_store_dwordx2 v[{16+2*r}:{17+2*r}], v4, {WS}, s60 offen offset:{64*r} sc1", tag="lnst")
        a.e("s_mov_b64 exec, -1")
        a.e("s_waitcnt lgkmcnt(0)"); a.e("s_barrier")
        for n in range(2):
            a.e(f"ds_read_b64_tr_b16 v[{32+4*n}:{33+4*n}], v25 offset:{64*n}"); a.e(f"ds_read_b64_tr_b16 v[{34+4*n}:{35+4*n}], v25 offset:{64*n+4*1088}")
        a.e("s_waitcnt lgkmcnt(2)")
        a.e(f"buffer_store_dwordx4 v[32:35], v27, {WS}, s63 offen sc1", tag="lnst")
        a.e("s_waitcnt lgkmcnt(0)")
        a.e(f"buffer_store_dwordx4 v[36:39], v27, {WS}, s61 offen sc1", tag="lnst")
        self.stamp(2)
        mid()
        self.nonce_get(58, 4)
        a.e("s_lshl_b32 s54, s62, 7"); a.e(f"s_add_u32 s54, s54, {FL_LN}")
        a.wait(v=("lnst",))
        a.e("s_barrier")
        self.flag_store("s54")
        self.stamp(3)
    def feat(self, P, Gm, t, vsc, norm=True):
        a = self.a
        M0, M1, S0, S1 = t, t + 1, t + 2, t + 3
        a.e(f"v_max3_f32 v{M0}, v{P}, v{P+1}, v{P+2}"); a.e(f"v_min3_f32 v{M1}, v{P}, v{P+1}, v{P+2}")
        a.e(f"v_max3_f32 v{M0}, v{M0}, v{P+3}, v{P+4}"); a.e(f"v_min3_f32 v{M1}, v{M1}, v{P+3}, v{P+4}")
        a.e(f"v_max3_f32 v{M0}, v{M0}, v{P+5}, v{P+6}"); a.e(f"v_min3_f32 v{M1}, v{M1}, v{P+5}, v{P+6}")
        a.e(f"v_max_f32 v{M0}, v{M0}, v{P+7}"); a.e(f"v_max_f32 v{M1}, -v{M1}, -v{P+7}")
        a.e(f"v_permlane32_swap_b32 v{M0}, v{M1}"); a.e(f"v_max_f32 v{M0}, v{M0}, v{M1}")
        a.e(f"v_mul_f32 v{M0}, v{vsc}, v{M0}")
        a.e(f"v_mov_b32 v{M1}, v{M0}"); a.e(f"v_permlane32_swap_b32 v{M0}, v{M1}")
        for i in range(8):
            a.e(f"v_fma_f32 v{Gm+i}, v{P+i}, v{vsc}, -v{M0}"); a.e(f"v_fma_f32 v{P+i}, -v{P+i}, v{vsc}, -v{M1}")
        for i in range(8):
            a.e(f"v_exp_f32 v{Gm+i}, v{Gm+i}"); a.e(f"v_exp_f32 v{P+i}, v{P+i}")
        a.e(f"v_add_f32 v{S0}, v{Gm}, v{Gm+1}"); a.e(f"v_add_f32 v{S1}, v{P}, v{P+1}")
        for i in range(2, 8):
            a.e(f"v_add_f32 v{S0}, v{S0}, v{Gm+i}"); a.e(f"v_add_f32 v{S1}, v{S1}, v{P+i}")
        a.e(f"v_permlane32_swap_b32 v{S0}, v{S1}"); a.e(f"v_add_f32 v{S0}, v{S0}, v{S1}")
        a.e(f"v_rcp_f32 v{S0}, v{S0}")
        a.e(f"v_mov_b32 v{S1}, v{S0}"); a.e(f"v_permlane32_swap_b32 v{S0}, v{S1}")
        for i in range(8):
            a.e(f"v_mul_f32 v{Gm+i}, v{Gm+i}, v{S0}"); a.e(f"v_mul_f32 v{P+i}, v{P+i}, v{S1}")
    def lds_sync(self, vaddr, target, t):
        a = self.a
        lp = a.newlabel("Lls"); dn = a.newlabel("Lld")
        a.e(f"v_mov_b32 v{t}, 1"); a.e("s_mov_b64 exec, 1"); a.e(f"ds_add_u32 {vaddr}, v{t}"); a.e("s_mov_b64 exec, -1")
        a.e("s_mov_b32 s96, 0")
        a.label(lp)
        a.e(f"ds_read_b32 v{t}, {vaddr}"); a.e("s_waitcnt lgkmcnt(0)"); a.e(f"v_readfirstlane_b32 s95, v{t}")
        a.e(f"s_cmp_ge_u32 s95, {target}"); a.e(f"s_cbranch_scc1 {dn}")
        a.e("s_add_u32 s96, s96, 1"); a.e("s_cmp_lt_u32 s96, 1000000"); a.e(f"s_cbranch_scc1 {lp}")
        a.label(dn)
    def p2_ids(self):
        a = self.a
        a.e(f"s_and_b32 s100, {sG}, 1"); a.e("s_lshl_b32 s100, s100, 2"); a.e(f"s_lshr_b32 s54, {sJ}, 3"); a.e("s_add_u32 s100, s100, s54")
        a.e(f"s_lshr_b32 s101, {sG}, 1"); a.e("s_lshl_b32 s101, s101, 3"); a.e(f"s_and_b32 s55, {sJ}, 7"); a.e("s_add_u32 s101, s101, s55")
        a.e("s_lshl_b32 s97, s54, 1"); a.e("s_add_u32 s97, s97, s55")
        a.e("s_mul_i32 s3, s55, 11"); a.e("s_lshr_b32 s3, s3, 2"); a.e("s_mul_i32 s54, s54, 11"); a.e("s_lshr_b32 s54, s54, 1"); a.e("s_add_u32 s3, s3, s54")
        a.e("s_cmp_ge_u32 s3, 22"); a.e("s_cselect_b32 s54, 22, 0"); a.e("s_sub_u32 s3, s3, s54")
    def p2_voff(self, nw):
        a = self.a
        a.e("v_bfe_u32 v2, v1, 4, 1"); a.e("v_lshlrev_b32 v2, 2, v2"); a.e("v_and_b32 v3, 7, v1"); a.e("v_xor_b32 v2, v2, v3"); a.e("v_lshlrev_b32 v2, 4, v2")
        a.e("v_lshrrev_b32 v3, 3, v1")
        if nw == 8: a.e(f"s_mov_b32 s68, {sW}")
        else: a.e(f"s_and_b32 s68, {sW}, 3"); a.e("s_lshl_b32 s68, s68, 1")
        a.e("s_lshl_b32 s69, s68, 10")
        a.e("v_lshl_add_u32 v60, v3, 12, v2"); a.e("s_lshl_b32 s54, s68, 15"); a.e("s_lshl_b32 s55, s101, 7"); a.e("s_add_u32 s54, s54, s55")
        a.e("v_add_u32 v60, s54, v60")
        if nw == 4:
            a.e("v_add_u32 v61, 0x8000, v60")
            a.e("v_lshl_add_u32 v62, v3, 10, v2"); a.e("s_lshl_b32 s54, s68, 13"); a.e("s_lshl_b32 s55, s100, 7"); a.e("s_add_u32 s54, s54, s55")
            a.e("v_add_u32 v62, s54, v62"); a.e("v_add_u32 v63, 0x2000, v62")
    def p2_rot(self, dst, n):
        a = self.a
        a.e(f"s_add_u32 {dst}, s3, {n}"); a.e(f"s_cmp_ge_u32 {dst}, 22"); a.e("s_cselect_b32 s54, 22, 0"); a.e(f"s_sub_u32 {dst}, {dst}, s54")
    def p2_w2(self, n, slot, i, tag=None):
        a = self.a
        if i == 0: self.p2_rot("s68", n); a.e("s_lshl_b32 s68, s68, 18")
        a.e(f"s_add_u32 m0, s69, {slot*8192 + i*1024}")
        a.e(f"buffer_load_dwordx4 v{60+i}, {W2}, s68 offen lds", tag=tag or f"w2_{n}")
    def p2_early(self, n, i): self.p2_w2(n, 4 + n, i)
    def role_a(self):
        a = self.a
        sTB, sHG, sROT, sTG, sHP = "s56", "s57", "s51", "s58", "s59"
        XR, AK, AV, AQ, WF = 128, 64, 80, 96, 112
        CS = 149504
        a.e(f"s_lshr_b32 {sTB}, {sG}, 1"); a.e(f"s_lshl_b32 {sTB}, {sTB}, 3"); a.e(f"s_and_b32 s54, {sJ}, 7"); a.e(f"s_add_u32 {sTB}, {sTB}, s54")
        a.e(f"s_and_b32 {sHG}, {sG}, 1"); a.e(f"s_lshl_b32 {sHG}, {sHG}, 2"); a.e(f"s_lshr_b32 s55, {sJ}, 3"); a.e(f"s_add_u32 {sHG}, {sHG}, s55")
        a.e(f"s_lshl_b32 {sROT}, s55, 1"); a.e(f"s_add_u32 {sROT}, {sROT}, s54")
        a.e(f"s_lshl_b32 s62, {sTB}, 3"); a.e(f"s_add_u32 s62, s62, {sHG}")
        a.e("s_lshl_b32 s54, s62, 4"); a.e(f"s_add_u32 s54, s54, {sW}"); a.e("s_lshl_b32 s54, s54, 10"); a.e("s_add_u32 s55, s54, 8192")
        a.e(f"buffer_load_dwordx4 v[16:19], v6, {X}, s54 offen", tag="xrow"); a.e(f"buffer_load_dwordx4 v[20:23], v6, {X}, s55 offen", tag="xrow")
        a.e(f"s_and_b32 {sTG}, {sW}, 3"); a.e(f"s_lshr_b32 {sHP}, {sW}, 2")
        a.e("v_lshrrev_b32 v2, 3, v1"); a.e("v_and_b32 v3, 7, v1"); a.e("v_lshrrev_b32 v5, 4, v1"); a.e("v_xor_b32 v5, v5, v3")
        a.e("v_lshlrev_b32 v8, 10, v2"); a.e("v_lshl_add_u32 v8, v5, 4, v8")
        a.e(f"s_lshl_b32 s54, {sTB}, 17"); a.e(f"s_lshl_b32 s55, {sW}, 14"); a.e("s_add_u32 s54, s54, s55")
        a.e("v_add_u32 v8, s54, v8"); a.e("v_xor_b32 v9, 64, v8"); a.e("v_add_u32 v9, 0x2000, v9")
        a.e("v_mul_u32_u24 v5, 3072, v2"); a.e("v_bfe_u32 v2, v1, 4, 1"); a.e("v_lshlrev_b32 v2, 2, v2"); a.e("v_xor_b32 v2, v2, v3")
        a.e("v_lshl_add_u32 v5, v2, 4, v5"); a.e(f"s_lshl_b32 s55, {sHG}, 7"); a.e(f"s_mul_i32 s54, {sW}, 24576"); a.e("s_add_u32 s55, s55, s54"); a.e("v_add_u32 v5, s55, v5")
        a.e("v_add_u32 v10, 1024, v5"); a.e("v_add_u32 v11, 2048, v5")
        a.e(f"s_lshl_b32 s64, {sW}, 11"); a.e(f"s_lshl_b32 s67, {sW}, 10")
        for c in range(8):
            a.e(f"s_add_u32 s65, {sROT}, {c}"); a.e("s_and_b32 s65, s65, 7"); a.e(f"s_lshl_b32 s{70+c}, s65, 7"); a.e(f"s_mul_i32 s{78+c}, s65, {64*3072}")
        def dma(c, i):
            if c < 8:
                if i < 2:
                    a.e(f"s_add_u32 m0, s64, {(c % 4)*16384 + i*1024}")
                    a.e(f"buffer_load_dwordx4 v{8+i}, {X}, s{70+c} offen lds", tag=f"d{c}")
                else:
                    a.e(f"s_add_u32 m0, s67, {65536 + (c % 4)*16384 + (i-2)*8192}")
                    a.e(f"buffer_load_dwordx4 v{8+i}, {WQKV}, s{78+c} offen lds", tag=f"d{c}")
            else:
                sl = c - 8
                qc = (i >> 1) * 4 + 2 * sl + (i & 1)
                a.e(f"s_add_u32 m0, s67, {qaddr(qc)}")
                a.e(f"buffer_load_dwordx4 v5, {WQKV}, s{78+qc} offen lds", tag=f"d{c}")
        def qaddr(qc): return (qc >> 2) * 65536 + (qc & 3) * 8192
        def dma4(c):
            for i in (0, 2, 1, 3): dma(c, i)
        a.e("s_barrier")
        dma4(0)
        self.ln_block(lambda: dma4(1))
        a.e("s_lshl_b32 s61, s62, 7"); a.e(f"s_add_u32 s63, s61, {FL_KV}"); a.e(f"s_add_u32 s61, s61, {FL_O}")
        dma4(2)
        a.e("v_lshrrev_b32 v3, 5, v1")
        a.e("v_bfe_u32 v2, v1, 4, 1"); a.e("v_lshlrev_b32 v2, 9, v2"); a.e("v_and_b32 v4, 15, v1"); a.e("v_lshl_add_u32 v2, v4, 1, v2")
        a.e("v_lshl_add_u32 v2, v3, 7, v2"); a.e(f"s_lshl_b32 s54, {sHG}, 11"); a.e(f"s_lshl_b32 s55, {sHP}, 10"); a.e("s_add_u32 s54, s54, s55")
        for jj in range(8):
            a.e(f"buffer_load_ushort v{96+jj}, v2, {WPHI}, s54 offen offset:{((jj>>2)*8 + (jj&3))*32}", tag="wphi")
        a.e("s_mov_b32 s89, 0x3f803f80")
        a.e("v_bfe_u32 v2, v1, 2, 2"); a.e("v_lshl_add_u32 v4, v3, 3, v2"); a.e("v_lshlrev_b32 v16, 7, v4")
        a.e("v_lshrrev_b32 v2, 1, v2"); a.e(f"v_xor_b32 v2, {sHP}, v2"); a.e("v_lshl_add_u32 v16, v2, 6, v16")
        a.e("v_bfe_u32 v2, v1, 4, 1"); a.e("v_lshl_add_u32 v16, v2, 5, v16"); a.e("v_and_b32 v2, 3, v1"); a.e("v_lshl_add_u32 v16, v2, 3, v16")
        a.e("v_add_u32 v17, 0x10000, v16")
        a.e(f"s_lshl_b32 s54, {sTG}, 11"); a.e("v_add_u32 v18, s54, v16"); a.e("v_add_u32 v19, s54, v17")
        a.e("v_and_b32 v2, 31, v1"); a.e("v_lshlrev_b32 v2, 7, v2"); a.e(f"s_lshl_b32 s54, {sTG}, 12"); a.e("v_add_u32 v2, s54, v2")
        a.e("v_bfe_u32 v4, v1, 1, 3"); a.e("v_xor_b32 v4, v4, v3")
        for ks in range(4):
            a.e(f"v_xor_b32 v20, {2*ks}, v4"); a.e(f"v_lshl_add_u32 v{12+ks}, v20, 4, v2")
        for i in range(3): a.e(f"v_mov_b32 v{28+i}, 0")
        a.e("v_and_b32 v2, 31, v1"); a.e("v_lshlrev_b32 v2, 5, v2"); a.e(f"s_lshl_b32 s54, {sHP}, 10"); a.e(f"s_add_u32 s54, s54, {CS}"); a.e("v_add_u32 v2, s54, v2")
        a.e("v_lshl_add_u32 v21, v3, 4, v2"); a.e("v_lshl_add_u32 v20, v3, 2, v2"); a.e(f"s_lshl_b32 s54, {sTG}, 3"); a.e("v_add_u32 v20, s54, v20")
        a.e("v_and_b32 v2, 1, v1"); a.e(f"s_lshl_b32 s54, {sTB}, 3"); a.e(f"s_lshl_b32 s55, {sTG}, 1"); a.e("s_add_u32 s54, s54, s55"); a.e("v_add_u32 v2, s54, v2")
        a.e("s_lshl_b32 s60, s54, 7"); a.e(f"s_add_u32 s60, s60, {ST_OFF}")
        a.e(f"s_add_u32 s54, {sHG}, 128"); a.e("v_mov_b32 v3, s54"); a.e("v_cmp_gt_u32 vcc, 2, v1"); a.e("v_cndmask_b32 v2, v3, v2, vcc")
        a.e("v_lshlrev_b32 v31, 7, v2"); a.e(f"v_add_u32 v31, {FL_LN}, v31")
        self.p2_ids()
        self.stamp(4)
        def fb(j, m): return (112 if m == 0 else 40) + 4 * (j % 4)
        def kvread(j):
            c, ks = j >> 2, j & 3
            r = XR + 4 * j
            a.e(f"ds_read_b128 v[{r}:{r+3}], v{12+ks} offset:{(c % 4)*16384}", tag=f"f{j}")
            for m in range(2):
                r = fb(j, m); off = (c % 4) * 16384 + m * 8192 + ks * 2048
                a.e(f"ds_read_b64_tr_b16 v[{r}:{r+1}], v17 offset:{off}", tag=f"f{j}"); a.e(f"ds_read_b64_tr_b16 v[{r+2}:{r+3}], v17 offset:{off+512}", tag=f"f{j}")
        def csread(vaddr, off, r):
            a.e(f"ds_read_b64_tr_b16 v[{r}:{r+1}], v{vaddr} offset:{off}", tag="cs"); a.e(f"ds_read_b64_tr_b16 v[{r+2}:{r+3}], v{vaddr} offset:{off+512}", tag="cs")
        def csacc(reg, r):
            for i in range(4): a.e(f"v_dot2_f32_bf16 v{reg}, v{r+i}, s89, v{reg}")
        pend = []
        for j in range(32):
            c, ks = j >> 2, j & 3
            if ks == 0:
                self.stamp(16 + c, fine=True)
                a.wait(v=(f"d{c}", f"d{c+1}") if c < 7 else ("d7",))
                a.e("s_barrier")
                if c == 0: kvread(0); kvread(1)
                if c + 3 < 10 and (c + 3 < 8 or c >= 5): pend = [(c + 3, i) for i in (0, 2, 1, 3)]
                csread(19, (c % 4) * 16384, 32); csread(19, (c % 4) * 16384 + 8192, 36)
                if c == 1:
                    a.wait(v=("wphi",))
                    for i in range(4): a.e(f"v_lshl_or_b32 v{24+i}, v{97+2*i}, 16, v{96+2*i}")
                if c == 5: self.poll_issue("v31", 22, "pf")
                if c == 6:
                    self.poll_check("v31", 22, "pf")
                    a.e("v_and_b32 v2, 31, v1"); a.e("v_lshlrev_b32 v2, 3, v2")
                    a.e(f"buffer_load_dwordx2 v[22:23], v2, {WS}, s60 offen sc1", tag="stat")
            if j + 2 < 32: kvread(j + 2)
            a.wait(l=(f"f{j}",))
            for m in range(2):
                acc = (AK, AV)[m]; r = fb(j, m)
                a.e(f"v_mfma_f32_32x32x16_bf16 v[{acc}:{acc+15}], v[{r}:{r+3}], v[{XR+4*j}:{XR+4*j+3}], " + ("0" if j == 0 else f"v[{acc}:{acc+15}]"))
                if m == 0 and pend: dma(*pend.pop(0))
            if ks == 2: a.wait(l=("cs",)); csacc(28, 32); csacc(29, 36)
        self.stamp(5)
        a.e("ds_write_b32 v20, v28"); a.e("ds_write_b32 v20, v29 offset:2048")
        PKB, VB = 32768, 98304
        a.e("v_and_b32 v3, 31, v1"); a.e("v_lshlrev_b32 v3, 6, v3"); a.e(f"s_lshl_b32 s54, {sTG}, 11"); a.e("v_add_u32 v3, s54, v3")
        a.e("v_bfe_u32 v4, v1, 1, 3"); a.e("v_lshrrev_b32 v2, 5, v1"); a.e("v_xor_b32 v4, v4, v2")
        a.e(f"s_lshl_b32 s54, {sHP}, 14"); a.e(f"s_add_u32 s54, s54, {PKB}"); a.e(f"s_lshl_b32 s55, {sHP}, 13"); a.e(f"s_add_u32 s55, s55, {VB}")
        for q in range(4):
            a.e(f"v_xor_b32 v{12+q}, {2*q}, v4"); a.e(f"v_lshl_add_u32 v{12+q}, v{12+q}, 3, v3")
            a.e(f"v_add_u32 v{8+q}, s55, v{12+q}"); a.e(f"v_add_u32 v{12+q}, s54, v{12+q}")
        def correct(items, t):
            for n, (ci, acc) in enumerate(items): a.e(f"ds_read_b128 v[{t+8+8*n}:{t+11+8*n}], v21 offset:{ci*2048}")
            a.e("s_waitcnt lgkmcnt(0)")
            for n, (ci, acc) in enumerate(items):
                c = t + 8 + 8 * n; b = t + 4 + 8 * n
                a.e(f"v_add_f32 v{c}, v{c}, v{c+1}"); a.e(f"v_add_f32 v{c+2}, v{c+2}, v{c+3}"); a.e(f"v_add_f32 v{c}, v{c}, v{c+2}")
                a.e(f"v_cvt_pk_bf16_f32 v{b+2}, v{c}, v{c}"); a.e(f"v_and_b32 v{b+2}, 0xffff0000, v{b+2}")
                a.e(f"v_sub_f32 v{c}, v{c}, v{b+2}"); a.e(f"v_cvt_pk_bf16_f32 v{b}, v{b+2}, v{c}")
                a.e(f"v_and_b32 v{b+3}, 0xffff0000, v{b}"); a.e(f"v_sub_f32 v{c}, v{c}, v{b+3}"); a.e(f"v_cvt_pk_bf16_f32 v{b+1}, v{b+2}, v{c}")
                a.e(f"v_mfma_f32_32x32x16_bf16 v[{acc}:{acc+15}], v[{b}:{b+3}], v[56:59], v[{acc}:{acc+15}]")
        a.wait(v=("stat",))
        a.e("v_sub_f32 v56, 0, v22"); a.e("v_cvt_pk_bf16_f32 v56, v56, v56"); a.e("v_and_b32 v57, 0xffff0000, v56")
        a.e("v_add_f32 v58, v22, v57"); a.e("v_sub_f32 v58, 0, v58"); a.e("v_cvt_pk_bf16_f32 v57, v58, v57")
        a.e("v_mov_b32 v58, 0"); a.e("v_mov_b32 v59, 0")
        a.e(f"v_mul_f32 v22, {f2h(LOG2E)}, v23")
        a.e("s_waitcnt lgkmcnt(0)"); a.e("s_barrier")
        correct([(0, AK), (1, AV)], 32)
        self.pack(AK, AK, 8)
        def feats(src, store):
            a.e(f"v_mfma_f32_32x32x16_bf16 v[96:111], v[24:27], v[{src}:{src+3}], 0")
            a.e(f"v_mfma_f32_32x32x16_bf16 v[112:127], v[24:27], v[{src+4}:{src+7}], 0")
            l0 = self.capture(lambda: (self.feat(96, 104, 32, 22), store(0, 96, 104)))
            l1 = self.capture(lambda: (self.feat(120, 112, 36, 22), store(1, 120, 112)))
            return [x for p in zip(l0, l1) for x in p]
        def store_k(hh, P, Gm):
            self.pack(Gm, Gm, 4); self.pack(Gm + 4, P, 4)
            for q in range(4): a.e(f"ds_write_b64 v{12+q}, v[{Gm+2*q}:{Gm+2*q+1}] offset:{hh*8192}")
        fl = feats(AK, store_k)
        for i in range(16): a.e(f"v_mul_f32 v{AV+i}, v{AV+i}, v23")
        self.pack(AV, AV, 8)
        for q in range(4): a.e(f"ds_write_b64 v{8+q}, v[{AV+2*q}:{AV+2*q+1}]")
        for s_, t_ in fl: a.e(s_, tag=t_)
        a.e("v_bfe_u32 v2, v1, 2, 2"); a.e("v_lshrrev_b32 v3, 5, v1"); a.e("v_lshl_add_u32 v4, v3, 3, v2")
        a.e("v_lshrrev_b32 v32, 1, v4"); a.e("v_lshlrev_b32 v4, 6, v4")
        a.e("v_and_b32 v33, 3, v1"); a.e("v_bfe_u32 v34, v1, 4, 1"); a.e("v_lshl_add_u32 v34, v34, 2, v33")
        a.e(f"s_and_b32 s54, {sW}, 1"); a.e("s_lshl_b32 s54, s54, 2"); a.e("v_add_u32 v33, s54, v33")
        a.e(f"s_lshl_b32 s54, {sTG}, 13"); a.e(f"s_add_u32 s54, s54, {PKB}"); a.e(f"s_lshr_b32 s55, {sTG}, 1"); a.e("s_lshl_b32 s55, s55, 13"); a.e(f"s_add_u32 s55, s55, {VB}")
        a.e("v_xor_b32 v34, v34, v32"); a.e("v_xor_b32 v33, v33, v32")
        a.e("v_lshl_add_u32 v36, v34, 3, v4"); a.e("v_add_u32 v36, s54, v36"); a.e("v_xor_b32 v37, 16, v36")
        a.e("v_lshl_add_u32 v38, v33, 3, v4"); a.e("v_add_u32 v38, s55, v38"); a.e("v_xor_b32 v39, 16, v38")
        a.e("v_and_b32 v35, 31, v1"); a.e("v_lshlrev_b32 v35, 2, v35"); a.e("v_lshl_add_u32 v35, v3, 9, v35")
        a.e(f"s_lshl_b32 s60, {sHG}, 14"); a.e(f"s_mul_i32 s55, {sTG}, 2176"); a.e("s_add_u32 s60, s60, s55"); a.e(f"s_add_u32 s60, s60, {KV_OFF}")
        a.e("v_and_b32 v2, 16, v1"); a.e("v_cmp_eq_u32 vcc, 0, v2"); a.e("v_mov_b32 v32, s89")
        a.wait(v=("d8", "d9"))
        a.e("s_waitcnt lgkmcnt(0)"); a.e("s_barrier")
        self.stamp(6)
        lab = a.newlabel("Lkv")
        a.e(f"s_cmp_gt_u32 {sW}, 3"); a.e(f"s_cbranch_scc1 {lab}")
        for k in range(8):
            b = 64 + 8 * k
            a.e(f"ds_read_b64_tr_b16 v[{b}:{b+1}], v38 offset:{k*1024}", tag=f"k{k}"); a.e(f"ds_read_b64_tr_b16 v[{b+2}:{b+3}], v39 offset:{k*1024+256}", tag=f"k{k}")
            a.e(f"ds_read_b64_tr_b16 v[{b+4}:{b+5}], v36 offset:{k*1024}", tag=f"k{k}"); a.e(f"ds_read_b64_tr_b16 v[{b+6}:{b+7}], v37 offset:{k*1024+256}", tag=f"k{k}")
        for k in range(8):
            b = 64 + 8 * k
            a.wait(l=(f"k{k}",))
            for i in range(4): a.e(f"v_cndmask_b32 v{b+i}, v32, v{b+i}, vcc")
            a.e(f"v_mfma_f32_32x32x16_bf16 v[40:55], v[{b}:{b+3}], v[{b+4}:{b+7}], " + ("0" if k == 0 else "v[40:55]"))
        a.track = False
        for r in range(8):
            a.e(f"buffer_atomic_add_f32 v{40+r}, v35, {WS}, s60 offen offset:{(8*(r>>2)+(r&3))*128} sc1")
        a.e("s_mov_b64 exec, 0xffffffff")
        a.e(f"buffer_atomic_add_f32 v48, v35, {WS}, s60 offen offset:2048 sc1")
        a.e("s_mov_b64 exec, -1")
        a.track = True
        a.label(lab)
        self.stamp(7)
        def qread(j):
            c, ks = j >> 2, j & 3
            r = 112 + 4 * (j % 4); off = (c & 3) * 8192 + ks * 2048; va = 16 + (c >> 2)
            a.e(f"ds_read_b64_tr_b16 v[{r}:{r+1}], v{va} offset:{off}", tag=f"f{j}"); a.e(f"ds_read_b64_tr_b16 v[{r+2}:{r+3}], v{va} offset:{off+512}", tag=f"f{j}")
        for j in range(3): qread(j)
        for j in range(32):
            c, ks = j >> 2, j & 3
            if j == 12:
                a.e("s_waitcnt vmcnt(0)"); a.e("s_barrier")
                self.flag_store("s63"); self.stamp(8)
                self.p2_voff(8)
                pend = [0, 1, 2, 3, 8, 9, 10, 11]
            if ks == 0: csread(18 + (c >> 2), (c & 3) * 8192, 64)
            if j + 3 < 32: qread(j + 3)
            a.wait(l=(f"f{j}",))
            r = 112 + 4 * (j % 4)
            a.e(f"v_mfma_f32_32x32x16_bf16 v[{AQ}:{AQ+15}], v[{r}:{r+3}], v[{XR+4*j}:{XR+4*j+3}], " + ("0" if j == 0 else f"v[{AQ}:{AQ+15}]"))
            if pend and j % 2: self.p2_early(pend.pop(0), 0)
            if ks == 3: a.wait(l=("cs",)); csacc(30, 64)
        assert not pend
        a.e("s_nop 2"); a.e("ds_write_b32 v20, v30 offset:4096")
        a.e("v_and_b32 v2, 15, v1"); a.e("v_lshlrev_b32 v2, 3, v2"); a.e(f"v_add_u32 v2, {sHG}, v2")
        a.e("v_lshlrev_b32 v31, 7, v2"); a.e(f"v_add_u32 v31, {FL_KV}, v31")
        a.e("s_waitcnt lgkmcnt(0)"); a.e("s_barrier")
        correct([(2, AQ)], 32)
        self.poll_issue("v31", 28, "pf")
        for n in (4, 5, 6, 7): self.p2_early(n, 0)
        self.pack(AK, AQ, 8)
        def store_q(hh, P, Gm):
            self.pack(AV + 8 * hh, Gm, 4); self.pack(AV + 8 * hh + 4, P, 4)
        fl = feats(AK, store_q)
        KS = CS + 6144
        half = len(fl) // 2
        for s_, t_ in fl[:half]: a.e(s_, tag=t_)
        self.poll_check("v31", 28, "pf")
        self.stamp(9)
        a.e("v_lshlrev_b32 v2, 4, v0"); a.e(f"s_lshl_b32 s54, {sHG}, 14"); a.e(f"s_add_u32 s54, s54, {KV_OFF}")
        a.e(f"buffer_load_dwordx4 v[40:43], v2, {WS}, s54 offen sc1", tag="kv")
        a.e("s_add_u32 s54, s54, 8192")
        a.e(f"buffer_load_dwordx4 v[44:47], v2, {WS}, s54 offen sc1", tag="kv")
        for s_, t_ in fl[half:]: a.e(s_, tag=t_)
        a.e("v_lshrrev_b32 v3, 3, v0"); a.e("v_mul_u32_u24 v3, 72, v3"); a.e("v_and_b32 v4, 7, v0"); a.e("v_lshl_add_u32 v3, v4, 3, v3"); a.e(f"v_add_u32 v3, {KS}, v3")
        a.e("v_and_b32 v2, 31, v1"); a.e("v_min_u32 v2, 16, v2"); a.e("v_mul_u32_u24 v2, 72, v2"); a.e("v_lshrrev_b32 v4, 5, v1"); a.e("v_lshl_add_u32 v2, v4, 3, v2")
        a.e(f"s_mul_i32 s54, {sHP}, {34*72}"); a.e(f"s_add_u32 s54, s54, {KS}"); a.e("v_add_u32 v2, s54, v2")
        a.e(f"s_lshl_b32 s54, {sTB}, 2"); a.e(f"s_add_u32 s54, s54, {sTG}"); a.e("s_lshl_b32 s54, s54, 15")
        a.e(f"s_lshl_b32 s55, {sHG}, 1"); a.e(f"s_add_u32 s55, s55, {sHP}"); a.e("s_lshl_b32 s55, s55, 11"); a.e("s_add_u32 s54, s54, s55"); a.e(f"s_add_u32 s54, s54, {OF_OFF}")
        a.wait(v=("kv",))
        self.pack(48, 40, 4)
        a.e("ds_write_b64 v3, v[48:49]")
        a.e("v_cmp_gt_u32 vcc, 32, v0"); a.e("s_and_saveexec_b64 s[90:91], vcc")
        a.e(f"ds_write_b64 v3, v[50:51] offset:{64*72}")
        a.e("s_mov_b64 exec, -1")
        a.e("s_waitcnt lgkmcnt(0)"); a.e("s_barrier")
        for hh in range(2):
            for q in range(4):
                r = 128 + 8 * hh + 2 * q
                a.e(f"ds_read_b64 v[{r}:{r+1}], v2 offset:{hh*17*72 + q*16}", tag=f"kf{hh}")
        for hh in range(2):
            a.wait(l=(f"kf{hh}",))
            d = 160 + 16 * hh; r = 128 + 8 * hh; p = AV + 8 * hh
            a.e(f"v_mfma_f32_32x32x16_bf16 v[{d}:{d+15}], v[{r}:{r+3}], v[{p}:{p+3}], 0")
            a.e(f"v_mfma_f32_32x32x16_bf16 v[{d}:{d+15}], v[{r+4}:{r+7}], v[{p+4}:{p+7}], v[{d}:{d+15}]")
        for hh in range(2):
            d = 160 + 16 * hh
            a.e(f"v_add_f32 v{d+8}, {f2h(1e-6)}, v{d+8}"); a.e(f"v_rcp_f32 v{d+8}, v{d+8}")
            for i in range(8): a.e(f"v_mul_f32 v{d+i}, v{d+i}, v{d+8}")
            o = 32 + 4 * hh
            self.pack(o, d, 4)
            a.e(f"buffer_store_dwordx4 v[{o}:{o+3}], v6, {WS}, s54 offen offset:{hh*1024} sc1")
        a.e("s_waitcnt vmcnt(0)"); a.e("s_barrier")
        self.flag_store("s61")
        self.stamp(10)
    def role_b(self):
        a = self.a
        sDB, sFB, sKH, sPH, sROT = "s56", "s57", "s58", "s59", "s51"
        NWS, WSB, NPS, PSB, PBASE = 10, 12288, 5, 8192, 122880
        XCH, CNT = 139264, 24576
        a.e(f"s_sub_u32 s66, {sG}, 4"); a.e(f"s_lshl_b32 {sFB}, s66, 2"); a.e(f"s_lshr_b32 s54, {sJ}, 3"); a.e(f"s_add_u32 {sFB}, {sFB}, s54"); a.e(f"s_and_b32 {sDB}, {sJ}, 7")
        a.e(f"s_lshl_b32 {sROT}, {sDB}, 2"); a.e("s_lshl_b32 s54, s54, 3"); a.e(f"s_add_u32 {sROT}, {sROT}, s54")
        a.e(f"s_cmp_ge_u32 {sFB}, 15"); a.e("s_cbranch_scc1 L_roleS")
        q0 = list(a.vq)
        a.e(f"s_cmp_lt_u32 {sW}, 4"); a.e("s_cbranch_scc1 L_bcons")
        a.e(f"s_and_b32 s67, {sW}, 3")
        a.e(f"s_mul_i32 s54, s67, {16*2752}"); a.e(f"s_mul_i32 s55, {sFB}, 192"); a.e("s_add_u32 s54, s54, s55")
        for i in range(3):
            a.e(f"v_add_u32 v2, {64*i}, v1"); a.e("v_mul_u32_u24 v3, 5462, v2"); a.e("v_lshrrev_b32 v3, 16, v3")
            a.e("v_mul_u32_u24 v4, 12, v3"); a.e("v_sub_u32 v4, v2, v4")
            a.e(f"v_mul_u32_u24 v3, 2752, v3"); a.e(f"v_lshl_add_u32 v{56+i}, v4, 4, v3"); a.e(f"v_add_u32 v{56+i}, s54, v{56+i}")
        a.e("s_mul_i32 s64, s67, 3072")
        def wdma(n):
            a.e(f"s_add_u32 s65, {sROT}, {n}"); a.e("s_and_b32 s65, s65, 31"); a.e(f"s_mul_i32 s65, s65, {64*2752}")
            for i in range(3):
                a.e(f"s_add_u32 m0, s64, {(n % NWS)*WSB + i*1024}")
                a.e(f"buffer_load_dwordx4 v{56+i}, {W1}, s65 offen lds", tag=f"w{n}")
        def pdma(n):
            a.e(f"s_add_u32 s65, {sROT}, {n}"); a.e("s_and_b32 s65, s65, 31"); a.e("s_lshl_b32 s65, s65, 12"); a.e("s_add_u32 s65, s65, s60")
            a.e(f"s_add_u32 m0, s63, {(n % NPS)*PSB}")
            a.e(f"buffer_load_dwordx4 v6, {WS}, s65 offen sc1 lds", tag=f"p{n}")
            a.e(f"buffer_load_dwordx4 v6, {WS}, s65 offen offset:1024 sc1 lds", tag=f"p{n}")
        wdma(0); wdma(1)
        self.nonce_issue(8, 4)
        a.e(f"s_lshl_b32 s60, {sDB}, 1"); a.e("s_lshr_b32 s54, s67, 1"); a.e("s_add_u32 s60, s60, s54"); a.e("s_lshl_b32 s60, s60, 17")
        a.e("s_and_b32 s54, s67, 1"); a.e("s_lshl_b32 s54, s54, 11"); a.e("s_add_u32 s60, s60, s54"); a.e(f"s_add_u32 s60, s60, {HF_OFF}")
        a.e("s_lshl_b32 s63, s67, 11"); a.e(f"s_add_u32 s63, s63, {PBASE}")
        self.p2_ids(); self.p2_voff(4)
        for n in range(2, NWS): wdma(n)
        self.nonce_get(8, 4)
        self.stamp(3)
        a.e("s_barrier")
        for n in range(4): pdma(n)
        a.wait(v=("p0", "p1"))
        a.e("s_barrier")
        early = list(range(12))
        for t in range(31):
            if t + 4 < 32: pdma(t + 4)
            if t >= 1 and t + NWS - 1 < 32: wdma(t + NWS - 1)
            if t >= 24:
                free_to = (t - 20) * WSB
                k = 0
                while early and (4 + early[0] + 1) * 8192 <= free_to and k < 2:
                    n = early.pop(0); self.p2_early(n, 0); self.p2_early(n, 1); k += 1
            a.wait(v=(f"p{t+2}", f"w{t+2}"))
            a.e("s_barrier")
        for n in early: self.p2_early(n, 0); self.p2_early(n, 1)
        a.e("s_branch L_phase2")
        a.label("L_bcons"); a.vq = list(q0); a.lq = []
        a.e(f"s_lshr_b32 {sKH}, {sW}, 1"); a.e(f"s_and_b32 {sPH}, {sW}, 1")
        self.nonce_issue(8, 4)
        ACC, FB = 64, 112
        a.e("v_lshrrev_b32 v3, 5, v1"); a.e("v_lshlrev_b32 v2, 3, v3"); a.e(f"s_mul_i32 s54, {sFB}, 192"); a.e(f"s_mul_i32 s55, {sKH}, 96"); a.e("s_add_u32 s54, s54, s55")
        for i in range(6):
            a.e(f"buffer_load_dwordx2 v[{40+2*i}:{41+2*i}], v2, {B1}, s54 offen offset:{16*i}", tag="b1")
        self.p2_ids()
        a.e("v_bfe_u32 v2, v1, 2, 2"); a.e("v_lshl_add_u32 v2, v3, 3, v2"); a.e("v_mul_u32_u24 v2, 192, v2"); a.e("v_and_b32 v5, 3, v1"); a.e("v_lshl_add_u32 v2, v5, 3, v2")
        a.e(f"s_mul_i32 s54, {sKH}, {32*192}"); a.e("v_add_u32 v2, s54, v2")
        a.e("v_bfe_u32 v5, v1, 4, 1"); a.e(f"s_mul_i32 s54, {sKH}, 3"); a.e("v_add_u32 v5, s54, v5")
        for f in range(3):
            a.e(f"v_add_u32 v10, {2*f}, v5"); a.e("v_subrev_u32 v11, 6, v10"); a.e("v_min_u32 v10, v10, v11")
            a.e(f"v_lshl_add_u32 v{16+f}, v10, 5, v2"); a.e(f"v_add_u32 v{19+f}, {5*WSB}, v{16+f}")
        a.e(f"s_lshl_b32 s54, {sPH}, 12"); a.e(f"s_lshl_b32 s55, {sKH}, 11"); a.e("s_add_u32 s54, s54, s55"); a.e(f"s_add_u32 s54, s54, {PBASE}"); a.e("v_add_u32 v22, s54, v6")
        a.e(f"s_mul_i32 s54, {sW}, 6144"); a.e(f"s_add_u32 s54, s54, {XCH}"); a.e("v_add_u32 v23, s54, v6")
        a.e(f"s_xor_b32 s54, {sW}, 2"); a.e("s_mul_i32 s54, s54, 6144"); a.e(f"s_add_u32 s54, s54, {XCH}"); a.e("v_add_u32 v24, s54, v6")
        a.e(f"v_mov_b32 v25, {CNT}")
        a.e(f"s_lshl_b32 s60, {sDB}, 1"); a.e(f"s_add_u32 s60, s60, {sPH}"); a.e(f"s_mul_i32 s60, s60, {UPITCH}"); a.e(f"s_mul_i32 s54, {sFB}, 6"); a.e("s_add_u32 s60, s60, s54")
        a.e(f"s_mul_i32 s54, {sKH}, 3"); a.e("s_add_u32 s60, s60, s54"); a.e("s_lshl_b32 s60, s60, 10"); a.e(f"s_add_u32 s60, s60, {UF_OFF}")
        a.e(f"s_mul_i32 s61, {sDB}, 15"); a.e(f"s_add_u32 s61, s61, {sFB}"); a.e("s_lshl_b32 s61, s61, 7"); a.e(f"s_add_u32 s61, s61, {FL_U}")
        c0 = -2.0 * math.sqrt(2.0 / math.pi) * LOG2E
        a.e(f"v_mov_b32 v26, {f2h(c0 * 0.044715)}"); a.e(f"v_mov_b32 v27, {f2h(c0)}")
        a.e("v_and_b32 v2, 31, v1"); a.e(f"s_lshl_b32 s54, {sW}, 5"); a.e("v_add_u32 v2, s54, v2")
        a.e("v_lshlrev_b32 v10, 7, v2"); a.e(f"v_add_u32 v10, {FL_LN}, v10")
        a.wait(v=("b1",))
        self.unpack(ACC, 40, 12)
        for i in range(24): a.e(f"v_mov_b32 v{ACC+24+i}, 0")
        self.nonce_get(8, 4)
        self.poll("v10")
        self.stamp(4)
        a.e("s_barrier")
        def rd(j):
            t, ks = j >> 1, j & 1
            b = FB + 16 * (j % 3)
            a.e(f"ds_read_b128 v[{b}:{b+3}], v22 offset:{(t % NPS)*PSB + ks*1024}", tag=f"f{j}")
            sl = t % NWS
            for f in range(3):
                off = (sl % 5) * WSB + ks * 3072; va = 16 + 3 * (sl // 5) + f; r = b + 4 + 4 * f
                a.e(f"ds_read_b64_tr_b16 v[{r}:{r+1}], v{va} offset:{off}", tag=f"f{j}"); a.e(f"ds_read_b64_tr_b16 v[{r+2}:{r+3}], v{va} offset:{off+768}", tag=f"f{j}")
        for j in range(64):
            t, ks = j >> 1, j & 1
            if ks == 0:
                if t % 2 == 0: self.stamp(16 + t // 2, fine=True)
                a.e("s_barrier")
                if t == 0: rd(0); rd(1)
                if t == 24: a.e("v_mov_b32 v2, 0"); a.e("ds_write_b32 v25, v2")
            a.wait(l=(f"f{j}",))
            b = FB + 16 * (j % 3)
            for f in range(3):
                c = ACC + 16 * f
                a.e(f"v_mfma_f32_32x32x16_bf16 v[{c}:{c+15}], v[{b+4+4*f}:{b+7+4*f}], v[{b}:{b+3}], v[{c}:{c+15}]")
                if f == 0 and j + 2 < 64: rd(j + 2)
        self.stamp(5)
        for i in range(6): a.e(f"ds_write_b128 v24, v[{ACC+24+4*i}:{ACC+27+4*i}] offset:{i*1024}")
        a.e("s_waitcnt lgkmcnt(0)")
        self.lds_sync("v25", 4, 2)
        for i in range(6): a.e(f"ds_read_b128 v[{112+4*i}:{115+4*i}], v23 offset:{i*1024}", tag=f"x{i>>1}")
        for u in range(3):
            A = ACC + 8 * u; Pn = 112 + 8 * u; T = 136 + 8 * u
            a.wait(l=(f"x{u}",))
            for i in range(8): a.e(f"v_add_f32 v{A+i}, v{A+i}, v{Pn+i}")
            for i in range(8): a.e(f"v_mul_f32 v{T+i}, v{A+i}, v{A+i}")
            for i in range(8): a.e(f"v_fma_f32 v{T+i}, v{T+i}, v26, v27")
            for i in range(8): a.e(f"v_mul_f32 v{T+i}, v{T+i}, v{A+i}")
            for i in range(8): a.e(f"v_exp_f32 v{T+i}, v{T+i}")
            for i in range(8): a.e(f"v_add_f32 v{T+i}, 1.0, v{T+i}")
            for i in range(8): a.e(f"v_rcp_f32 v{T+i}, v{T+i}")
            for i in range(8): a.e(f"v_mul_f32 v{T+i}, v{T+i}, v{A+i}")
            o = 40 + 4 * u
            self.pack(o, T, 4)
            a.e(f"buffer_store_dwordx4 v[{o}:{o+3}], v6, {WS}, s60 offen offset:{u*1024} sc1")
        self.stamp(6)
        a.e(f"v_mov_b32 v2, {sN0}"); a.e(f"v_mov_b32 v3, {sN1}"); a.e("v_mov_b32 v5, 1")
        a.e("s_waitcnt vmcnt(0)")
        a.e("s_mov_b64 exec, 1")
        a.e("ds_add_rtn_u32 v5, v25, v5"); a.e("s_waitcnt lgkmcnt(0)"); a.e("v_readfirstlane_b32 s95, v5")
        lab = a.newlabel("Lnf")
        a.e("s_cmp_lg_u32 s95, 7"); a.e(f"s_cbranch_scc1 {lab}")
        a.e(f"buffer_store_dwordx2 v[2:3], v4, {WS}, s61 offen sc1")
        a.label(lab)
        a.e("s_mov_b64 exec, -1")
        self.stamp(10)
    def role_s(self):
        a = self.a
        self.nonce_issue(8, 4)
        for i in range(4): a.e(f"v_mov_b32 v{28+i}, 0")
        a.e("v_lshlrev_b32 v23, 4, v0"); a.e("s_lshl_b32 s54, s56, 14"); a.e(f"s_add_u32 s54, s54, {KV_OFF}")
        a.e(f"buffer_store_dwordx4 v[28:31], v23, {WS}, s54 offen sc1")
        a.e("s_add_u32 s54, s54, 8192")
        a.e(f"buffer_store_dwordx4 v[28:31], v23, {WS}, s54 offen sc1")
        self.p2_ids(); self.p2_voff(8)
        a.e("s_waitcnt vmcnt(0)")
        self.nonce_get(8, 4)
        a.e("s_barrier")
        a.e("s_add_u32 s54, s56, 128"); a.e("s_lshl_b32 s54, s54, 7"); a.e(f"s_add_u32 s54, s54, {FL_LN}")
        self.flag_store("s54")
        self.stamp(3)
        for n in range(12): self.p2_early(n, 0)
    def phase2(self):
        a = self.a
        a.vq = []; a.lq = []
        sDB, sTB, sKH, sPH = "s100", "s101", "s58", "s59"
        FIN = 0
        a.e("v_lshrrev_b32 v2, 3, v0"); a.e("v_and_b32 v3, 7, v0"); a.e("v_lshlrev_b32 v56, 10, v2"); a.e("v_lshl_add_u32 v56, v3, 4, v56")
        a.e(f"s_lshl_b32 s67, {sTB}, 16"); a.e(f"s_lshl_b32 s54, {sDB}, 7"); a.e("s_add_u32 s67, s67, s54")
        a.e(f"buffer_load_dwordx4 v[96:99], v56, {X}, s67 offen", tag="xt")
        a.e("v_lshlrev_b32 v4, 1, v2"); a.e(f"s_lshl_b32 s54, {sTB}, 7")
        a.e(f"buffer_load_ushort v52, v4, {B2}, s54 offen", tag="xt")
        a.e("v_mul_u32_u24 v57, 272, v2"); a.e("v_lshl_add_u32 v57, v3, 5, v57")
        a.e(f"v_mov_b32 v53, {f2h(-LOG2E)}")
        W2SLOT = {n: 4 + n for n in range(12)}; W2SLOT.update({12: 0, 13: 1, 14: 2, 15: 3, 16: 16, 17: 17, 18: 18, 19: 19, 20: 16, 21: 17})
        WOSLOT = {k: 4 + 2 * k for k in range(6)}; WOSLOT.update({6: 0, 7: 2})
        USLOT = lambda n: n % 16
        def fin_read(dst):
            for arr in range(2):
                for hf in range(2):
                    r = dst + 8 * arr + 4 * hf
                    a.e(f"ds_read_b128 v[{r}:{r+3}], v57 offset:{FIN + arr*17408 + hf*16}")
            a.e("s_waitcnt lgkmcnt(0)")
        def s_collect():
            fin_read(16)
            for i in range(8): a.e(f"v_add_f32 v{100+i}, v{16+i}, v{24+i}")
        a.e(f"s_cmp_lt_u32 {sW}, 4"); a.e("s_cbranch_scc1 L_pcons")
        q0 = list(a.vq)
        self.p2_voff(4)
        a.e(f"s_and_b32 s66, {sW}, 3")
        a.e("v_and_b32 v3, 7, v1"); a.e(f"s_lshr_b32 s54, {sTB}, 1"); a.e("s_lshl_b32 s54, s54, 3"); a.e("v_add_u32 v3, s54, v3"); a.e("v_lshlrev_b32 v3, 7, v3"); a.e(f"v_add_u32 v59, {FL_O}, v3")
        a.e("v_min_u32 v2, 14, v1"); a.e(f"s_mul_i32 s54, {sDB}, 15"); a.e("v_add_u32 v2, s54, v2"); a.e("v_lshlrev_b32 v2, 7, v2"); a.e(f"v_add_u32 v58, {FL_U}, v2")
        a.e("s_lshr_b32 s55, s66, 1"); a.e("s_and_b32 s65, s66, 1"); a.e("s_lshl_b32 s65, s65, 11")
        a.e(f"s_lshl_b32 s60, {sDB}, 1"); a.e("s_add_u32 s60, s60, s55"); a.e(f"s_mul_i32 s60, s60, {UPITCH*1024}"); a.e("s_add_u32 s60, s60, s65"); a.e(f"s_add_u32 s60, s60, {UF_OFF}")
        a.e(f"s_lshl_b32 s61, {sTB}, 1"); a.e("s_add_u32 s61, s61, s55"); a.e("s_lshl_b32 s61, s61, 15"); a.e("s_add_u32 s61, s61, s65"); a.e(f"s_add_u32 s61, s61, {OF_OFF}")
        for n in range(22):
            self.p2_rot("s65", n); a.e("s_lshl_b32 s65, s65, 12"); a.e(f"s_add_u32 s{70+n}, s65, s60")
        def w2(n):
            for i in range(2): self.p2_w2(n, W2SLOT[n], i)
        def wo(k):
            a.e(f"s_add_u32 s65, s97, {k}"); a.e("s_and_b32 s65, s65, 7"); a.e("s_lshl_b32 s64, s65, 16"); a.e("s_lshl_b32 s65, s65, 12"); a.e("s_add_u32 s65, s65, s61")
            for i in range(2):
                a.e(f"s_add_u32 m0, s69, {WOSLOT[k]*8192 + i*1024}")
                a.e(f"buffer_load_dwordx4 v{62+i}, {WO}, s64 offen lds", tag=f"wo{k}")
            a.e(f"s_add_u32 m0, s69, {(WOSLOT[k]+1)*8192}")
            a.e(f"buffer_load_dwordx4 v6, {WS}, s65 offen sc1 lds", tag=f"wo{k}"); a.e(f"buffer_load_dwordx4 v6, {WS}, s65 offen offset:1024 sc1 lds", tag=f"wo{k}")
        def ud(n):
            a.e(f"s_add_u32 m0, s69, {USLOT(n)*8192}")
            a.e(f"buffer_load_dwordx4 v6, {WS}, s{70+n} offen sc1 lds", tag=f"u{n}"); a.e(f"buffer_load_dwordx4 v6, {WS}, s{70+n} offen offset:1024 sc1 lds", tag=f"u{n}")
        a.e("s_waitcnt vmcnt(0)"); a.e("s_barrier")
        self.poll_issue("v59", 8, "pf")
        for n in range(12, 20): w2(n)
        self.poll_check("v59", 8, "pf")
        self.stamp(11)
        a.e("s_barrier")
        for k in range(3): wo(k)
        a.wait(v=("w2_17",)); a.e("s_barrier")
        for k in range(3, 6): wo(k)
        a.wait(v=("wo2",)); a.e("s_barrier")
        wo(6); wo(7); w2(20); w2(21)
        a.wait(v=("wo5",)); a.e("s_barrier")
        a.wait(v=("wo7",)); a.e("s_barrier")
        a.e("s_barrier")
        a.e("s_barrier")
        s_collect()
        self.stamp(15)
        self.poll("v58")
        a.e("s_waitcnt vmcnt(0)")
        a.e("s_barrier")
        self.stamp(12)
        UB = [2, 4, 6, 9, 12, 15, 18, 20, 22]
        nxt = 0
        for k, ub in enumerate(UB):
            lim = min(22, ub + 4)
            if k >= 2: lim = min(lim, UB[k - 2] + 16 - 1)
            else: lim = min(lim, 16)
            while nxt < lim: ud(nxt); nxt += 1
            a.wait(v=(f"u{ub-1}",)); a.e("s_barrier")
        assert nxt == 22
        a.e("s_branch L_fin")
        a.label("L_pcons"); a.vq = list(q0); a.lq = []
        a.e(f"s_lshr_b32 {sKH}, {sW}, 1"); a.e(f"s_and_b32 {sPH}, {sW}, 1")
        ACC, WR, FB = 64, 112, 16
        a.e("v_bfe_u32 v2, v1, 2, 2"); a.e("v_lshrrev_b32 v3, 5, v1"); a.e("v_lshl_add_u32 v4, v3, 2, v2"); a.e("v_lshlrev_b32 v8, 7, v4")
        a.e("v_lshrrev_b32 v2, 1, v2"); a.e("v_lshl_add_u32 v8, v2, 6, v8")
        a.e("v_bfe_u32 v2, v1, 4, 1"); a.e("v_lshl_add_u32 v8, v2, 5, v8"); a.e("v_and_b32 v2, 3, v1"); a.e("v_lshl_add_u32 v8, v2, 3, v8")
        a.e(f"s_lshl_b32 s54, {sKH}, 12"); a.e("v_add_u32 v8, s54, v8"); a.e("v_xor_b32 v9, 64, v8")
        a.e("v_add_u32 v10, 0x10000, v8"); a.e("v_add_u32 v11, 0x10000, v9")
        a.e(f"s_lshl_b32 s54, {sPH}, 6"); a.e("v_xor_b32 v12, s54, v8"); a.e("v_add_u32 v13, 0x10000, v12"); a.e("v_add_u32 v14, 0x20000, v12")
        a.e(f"s_lshl_b32 s54, {sKH}, 11"); a.e("v_add_u32 v58, s54, v6"); a.e("v_add_u32 v59, 0x10000, v58")
        a.e(f"s_lshl_b32 s54, {sPH}, 12"); a.e("v_add_u32 v60, s54, v58"); a.e("v_add_u32 v61, 0x10000, v60")
        a.e("v_and_b32 v2, 31, v1"); a.e("v_mul_u32_u24 v2, 272, v2"); a.e("v_lshl_add_u32 v54, v3, 4, v2")
        a.e(f"s_mul_i32 s54, {sKH}, 17408"); a.e(f"s_mul_i32 s55, {sPH}, {32*272}"); a.e("s_add_u32 s54, s54, s55"); a.e("v_add_u32 v54, s54, v54")
        def w2read(n, ks, r, tag=None):
            sl = W2SLOT[n]; off = (sl % 8) * 8192 + ks * 2048; va = 12 + sl // 8
            a.e(f"ds_read_b64_tr_b16 v[{r}:{r+1}], v{va} offset:{off}", tag=tag); a.e(f"ds_read_b64_tr_b16 v[{r+2}:{r+3}], v{va} offset:{off+1024}", tag=tag)
        def stage_out():
            for dh in range(2):
                for q in range(4): a.e(f"ds_write_b128 v54, v[{ACC+16*dh+4*q}:{ACC+16*dh+4*q+3}] offset:{FIN + dh*128 + q*32}")
            a.e("s_waitcnt lgkmcnt(0)")
        a.e("s_waitcnt vmcnt(0)"); a.e("s_barrier")
        self.stamp(11)
        for n in range(12):
            for ks in range(2): w2read(n, ks, WR + 8 * n + 4 * ks)
        a.e("s_waitcnt lgkmcnt(0)"); a.e("s_barrier")
        a.e("s_barrier")
        for n in range(12, 18):
            for ks in range(2): w2read(n, ks, WR + 8 * n + 4 * ks)
        a.e("s_waitcnt lgkmcnt(0)")
        def word(j):
            k, ks = j >> 1, j & 1
            b = FB + 12 * (j % 3); sl = WOSLOT[k]
            a.e(f"ds_read_b128 v[{b}:{b+3}], v{60+(sl+1)//8} offset:{((sl+1) % 8)*8192 + ks*1024}", tag=f"f{j}")
            for dh in range(2):
                off = (sl % 8) * 8192 + ks * 2048; va = 8 + 2 * (sl // 8) + dh; r = b + 4 + 4 * dh
                a.e(f"ds_read_b64_tr_b16 v[{r}:{r+1}], v{va} offset:{off}", tag=f"f{j}"); a.e(f"ds_read_b64_tr_b16 v[{r+2}:{r+3}], v{va} offset:{off+1024}", tag=f"f{j}")
        for lo, hi in ((0, 6), (6, 12), (12, 16)):
            a.e("s_barrier")
            word(lo); word(lo + 1)
            for j in range(lo, hi):
                a.wait(l=(f"f{j}",))
                b = FB + 12 * (j % 3)
                for dh in range(2):
                    c = ACC + 16 * dh
                    a.e(f"v_mfma_f32_32x32x16_bf16 v[{c}:{c+15}], v[{b+4+4*dh}:{b+7+4*dh}], v[{b}:{b+3}], " + ("0" if j == 0 else f"v[{c}:{c+15}]"))
                    if dh == 0 and j + 2 < hi: word(j + 2)
        a.e("s_barrier")
        stage_out()
        a.e("s_barrier")
        s_collect()
        self.stamp(15)
        a.e("s_barrier")
        self.stamp(12)
        def urd(j):
            n, ks = j >> 1, j & 1
            b = FB + 12 * (j % 3); sl = USLOT(n)
            for dh in range(2):
                a.e(f"ds_read_b128 v[{b+4*dh}:{b+4*dh+3}], v{58+sl//8} offset:{(sl % 8)*8192 + dh*4096 + ks*1024}", tag=f"f{j}")
            if n >= 18: w2read(n, ks, b + 8, tag=f"f{j}")
        nrd = 0; ncomp = 0
        def comp(j):
            a.wait(l=(f"f{j}",))
            b = FB + 12 * (j % 3); n = j >> 1
            w = b + 8 if n >= 18 else WR + 4 * j
            for dh in range(2):
                c = ACC + 16 * dh
                a.e(f"v_mfma_f32_32x32x16_bf16 v[{c}:{c+15}], v[{b+4*dh}:{b+4*dh+3}], v[{w}:{w+3}], " + ("0" if j == 0 else f"v[{c}:{c+15}]"))
        for k, ub in enumerate(UB):
            self.stamp(40 + k, fine=True)
            a.e("s_barrier")
            while nrd < 2 * ub:
                urd(nrd); nrd += 1
                if nrd - ncomp >= 3: comp(ncomp); ncomp += 1
        while ncomp < 44: comp(ncomp); ncomp += 1
        self.stamp(13)
        FIN = 6 * 8192
        stage_out()
        a.label("L_fin")
        a.e("v_lshlrev_b32 v52, 16, v52")
        self.unpack(40, 96, 4)
        a.e("s_barrier")
        a.e(f"v_add_u32 v57, {FIN}, v57"); FIN = 0
        fin_read(16)
        for i in range(8): a.e(f"v_add_f32 v{16+i}, v{16+i}, v{24+i}")
        for i in range(8): a.e(f"v_add_f32 v{16+i}, v{16+i}, v52")
        for i in range(8): a.e(f"v_mul_f32 v{24+i}, v53, v{16+i}")
        for i in range(8): a.e(f"v_exp_f32 v{24+i}, v{24+i}")
        for i in range(8): a.e(f"v_mul_f32 v{16+i}, v{16+i}, v{100+i}")
        for i in range(8): a.e(f"v_add_f32 v{24+i}, 1.0, v{24+i}")
        for i in range(8): a.e(f"v_rcp_f32 v{24+i}, v{24+i}")
        for i in range(8): a.e(f"v_fma_f32 v{16+i}, v{16+i}, v{24+i}, v{40+i}")
        self.pack(8, 16, 4)
        a.e(f"buffer_store_dwordx4 v[8:11], v56, {OUT}, s67 offen")
        if self.stamps:
            a.e("s_waitcnt vmcnt(0)")
            self.stamp(14)
            a.e("v_lshlrev_b32 v2, 2, v0"); a.e("s_lshl_b32 s54, s2, 11"); a.e(f"s_add_u32 s54, s54, {STAMP_OFF}")
            a.e(f"buffer_store_dword v7, v2, {WS}, s54 offen")
    def build(self):
        a = self.a
        a.raw(HDR.rstrip())
        a.raw(f"; @launch grid=(256,1,1) block=(512,1,1) lds={LDS_BYTES}")
        a.raw('.amdgcn_target "amdgcn-amd-amdhsa--gfx950"'); a.raw(".text"); a.raw(f".globl {NAME}_kernel"); a.raw(".p2align 8")
        a.raw(f".type {NAME}_kernel,@function"); a.label(f"{NAME}_kernel")
        self.prologue()
        q0 = list(a.vq)
        a.e(f"s_cmp_lt_u32 {sG}, 4"); a.e("s_cbranch_scc1 L_roleA")
        self.role_b()
        a.label("L_phase2")
        a.e("s_nop 1")
        self.phase2()
        a.e("s_endpgm")
        a.label("L_roleS"); a.vq = list(q0); a.lq = []
        self.role_s()
        a.e("s_branch L_phase2")
        a.label("L_roleA"); a.vq = list(q0); a.lq = []
        self.role_a()
        a.e("s_branch L_phase2")
        a.label("L_end")
        a.e("s_endpgm")
        a.raw('.section .rodata,"a"'); a.raw(".p2align 6"); a.raw(f".amdhsa_kernel {NAME}_kernel")
        for l in ("next_free_vgpr 256", "next_free_sgpr 102", "accum_offset 256", "group_segment_fixed_size 0", "kernarg_size 96",
                  "user_sgpr_count 2", "user_sgpr_kernarg_segment_ptr 1", "system_sgpr_workgroup_id_x 1", "float_denorm_mode_32 3"):
            a.raw("  .amdhsa_" + l)
        a.raw(".end_amdhsa_kernel")
        return a.render()

if __name__ == "__main__":
    stamps = "--stamps" in sys.argv
    out = [x for x in sys.argv[1:] if not x.startswith("--")]
    g = G(stamps)
    txt = g.build()
    open(out[0] if out else "k.s", "w").write(txt)
    print("lines", txt.count("\n"), "nops", g.a.nops)
```

```python
import sys, math, os, struct
from asmlib import Asm

NAME = "recurrent_scan__linear_kernel_hedgehog__mixer_token_mlp__prompt"
HDR = open("cdna_kernels/" + NAME + ".s.ref").read().split("; Override launch geometry")[0]

HF_OFF, OF_OFF, UF_OFF, KV_OFF, FL_OFF, ST_OFF, STAMP_OFF = 0x200000, 0x400000, 0x600000, 0x880000, 0x820000, 0x840000, 0x900000
KVZ_OFF = KV_OFF
FL_LN, FL_KV, FL_O, FL_U = FL_OFF, FL_OFF + 0x8000, FL_OFF + 0xC000, FL_OFF + 0x10000
WS_SIZE = 0x1000000
UPITCH = 90
LDS_BYTES = 163840
X, WQKV, WPHI, WO, W1, B1, W2, B2, OUT, DBG, WS = [f"s[{i}:{i+3}]" for i in range(4, 48, 4)]
SRD_SIZES = [2097152, 1572864, 16384, 524288, 5636096, 2752, 5636096, 4096, 2097152, 256, WS_SIZE]
SRD_PTR = [64, 66, 68, 70, 74, 76, 78, 80, 82, 84, 86]
sW, sG, sJ = "s48", "s49", "s50"
sN0, sN1, sNON = "s52", "s53", "s[52:53]"
LOG2E = 1.4426950408889634
SPIN_MAX = 20000
SLEEP = int(os.environ.get("SLEEP", "1"))
FINE = int(os.environ.get("FINE", "0"))
KVJ = int(os.environ.get("KVJ", "14"))
TOUCH = int(os.environ.get("TOUCH", "1"))
NT = int(os.environ.get("NT", "0"))
BMAP = int(os.environ.get("BMAP", "24"))
WAITW = int(os.environ.get("WAITW", "0"))
NWS_ = int(os.environ.get("NWS", "9"))
NPS_ = int(os.environ.get("NPS", "6"))
PRE = int(os.environ.get("PRE", "7"))
CODEPF = int(os.environ.get("CODEPF", "1"))
WARM = int(os.environ.get("WARM", "1"))

def f2h(x): return "0x%08x" % struct.unpack("<I", struct.pack("<f", x))[0]

class G:
    def __init__(self, stamps=False):
        self.a = Asm(); self.stamps = stamps
    def stamp(self, idx, fine=False):
        if not self.stamps or (fine and not FINE): return
        a = self.a
        a.e("s_memrealtime s[98:99]"); a.e("s_waitcnt lgkmcnt(0)"); a.e(f"v_writelane_b32 v7, s98, {idx}")
    def capture(self, fn):
        a = self.a; out = []
        save = a.e
        a.e = lambda s, tag=None: out.append((s, tag))
        fn()
        a.e = save
        return out
    def unpack(self, dst0, src0, n):
        for i in range(n):
            self.a.e(f"v_lshlrev_b32 v{dst0+2*i}, 16, v{src0+i}")
            self.a.e(f"v_and_b32 v{dst0+2*i+1}, 0xffff0000, v{src0+i}")
    def pack(self, dst0, src0, n):
        for i in range(n):
            self.a.e(f"v_cvt_pk_bf16_f32 v{dst0+i}, v{src0+2*i}, v{src0+2*i+1}")
    def wave0_begin(self):
        a = self.a; lab = a.newlabel("Lw0")
        a.e(f"s_cmp_lg_u32 {sW}, 0"); a.e(f"s_cbranch_scc1 {lab}"); self._tr = a.track; a.track = False
        return lab
    def wave0_end(self, lab):
        self.a.label(lab); self.a.track = self._tr
    def flag_store(self, soff_reg, t=2):
        a = self.a
        lab = self.wave0_begin()
        a.e(f"v_mov_b32 v{t}, {sN0}"); a.e(f"v_mov_b32 v{t+1}, {sN1}"); a.e(f"v_mov_b32 v{t+2}, 0")
        a.e("s_mov_b64 exec, 1")
        a.e(f"buffer_store_dwordx2 v[{t}:{t+1}], v{t+2}, {WS}, {soff_reg} offen sc1")
        a.e("s_mov_b64 exec, -1")
        self.wave0_end(lab)
    def poll(self, vaddr, tmp=8, pre=False, nl=64):
        a = self.a
        tr = a.track; a.track = False
        a.e("s_mov_b32 s96, 0")
        for stage in ((0, 1) if pre else (1,)):
            lp = a.newlabel("Lpoll"); dn = a.newlabel("Lpd")
            a.e("s_mov_b64 exec, 1" if stage == 0 else ("s_mov_b64 exec, -1" if nl == 64 else f"s_mov_b64 exec, {hex((1 << nl) - 1)}"))
            a.label(lp)
            a.e(f"buffer_load_dwordx2 v[{tmp}:{tmp+1}], {vaddr}, {WS}, 0 offen sc1")
            a.e("s_waitcnt vmcnt(0)")
            a.e(f"v_cmp_ne_u64 vcc, {sNON}, v[{tmp}:{tmp+1}]")
            a.e("s_add_u32 s96, s96, 1")
            a.e("s_cmp_eq_u64 vcc, 0"); a.e(f"s_cbranch_scc1 {dn}")
            a.e("s_mov_b64 exec, vcc")
            a.e(f"s_cmp_gt_u32 s96, {SPIN_MAX}"); a.e(f"s_cbranch_scc1 {dn}")
            a.e(f"s_sleep {SLEEP if stage else 2}"); a.e(f"s_branch {lp}")
            a.label(dn)
        a.e("s_mov_b64 exec, -1")
        a.track = tr
    def poll_issue(self, vaddr, tmp, tag):
        self.a.e(f"buffer_load_dwordx2 v[{tmp}:{tmp+1}], {vaddr}, {WS}, 0 offen sc1", tag=tag)
    def poll_check(self, vaddr, tmp, tag):
        a = self.a; ok = a.newlabel("Lok")
        a.wait(v=(tag,))
        a.e(f"v_cmp_ne_u64 vcc, {sNON}, v[{tmp}:{tmp+1}]")
        a.e("s_cmp_eq_u64 vcc, 0"); a.e(f"s_cbranch_scc1 {ok}")
        self.poll(vaddr, tmp=tmp)
        a.label(ok)
    def nonce_issue(self, tmp, z):
        self.a.e(f"v_mov_b32 v{z}, 0")
        self.a.e(f"buffer_load_dwordx2 v[{tmp}:{tmp+1}], v{z}, {DBG}, 0 offen sc1", tag="nonce")
    def nonce_get(self, tmp, z):
        a = self.a
        a.wait(v=("nonce",))
        lp = a.newlabel("Lnp"); dn = a.newlabel("Lnd")
        tr = a.track; a.track = False
        a.e("s_mov_b32 s96, 0")
        a.label(lp)
        a.e(f"v_readfirstlane_b32 {sN0}, v{tmp}"); a.e(f"v_readfirstlane_b32 {sN1}, v{tmp+1}")
        a.e(f"s_cmp_lg_u32 {sN1}, 0"); a.e(f"s_cbranch_scc1 {dn}")
        a.e("s_add_u32 s96, s96, 1"); a.e(f"s_cmp_gt_u32 s96, {SPIN_MAX}"); a.e(f"s_cbranch_scc1 {dn}")
        a.e("s_sleep 1")
        a.e(f"buffer_load_dwordx2 v[{tmp}:{tmp+1}], v{z}, {DBG}, 0 offen sc1"); a.e("s_waitcnt vmcnt(0)")
        a.e(f"s_branch {lp}")
        a.label(dn)
        a.track = tr
    def prologue(self):
        a = self.a
        a.e("s_cmp_ge_u32 s2, 256"); a.e("s_cbranch_scc1 L_end")
        a.e("s_load_dwordx16 s[64:79], s[0:1], 0"); a.e("s_load_dwordx8 s[80:87], s[0:1], 64")
        a.e("s_memrealtime s[92:93]")
        a.e("v_and_b32 v1, 63, v0"); a.e("v_lshrrev_b32 v2, 6, v0"); a.e(f"v_readfirstlane_b32 {sW}, v2")
        a.e("v_lshlrev_b32 v6, 4, v1")
        if CODEPF:
            a.e("s_getpc_b64 s[88:89]")
            a.label("L_pc")
            a.e("s_bfe_u32 s54, s2, 0x30003"); a.e("s_lshl_b32 s54, s54, 13")
            a.e("v_lshlrev_b32 v2, 10, v2"); a.e("v_lshl_add_u32 v2, v1, 7, v2"); a.e("v_add_u32 v2, s54, v2")
            a.e("v_min_u32 v2, L_end-L_pc, v2")
            a.e("v_mov_b32 v3, s89"); a.e("v_add_co_u32 v2, vcc, s88, v2"); a.e("v_addc_co_u32 v3, vcc, 0, v3, vcc")
            a.e("s_mov_b64 exec, 0xff")
            a.e("global_load_dword v255, v[2:3], off", tag="cpf")
            a.e("s_mov_b64 exec, -1")
        a.e(f"s_and_b32 {sG}, s2, 7"); a.e(f"s_lshr_b32 {sJ}, s2, 3")
        for i, sz in enumerate(SRD_SIZES):
            a.e(f"s_mov_b32 s{4+4*i+2}, {sz}"); a.e(f"s_mov_b32 s{4+4*i+3}, 0x20000")
        a.e("s_waitcnt lgkmcnt(0)")
        if self.stamps:
            a.e("v_mov_b32 v7, 0"); a.e("v_writelane_b32 v7, s92, 0")
        a.e("s_mov_b64 s[40:41], s[84:85]")
        lab = a.newlabel("Lnon")
        a.e(f"s_or_b32 s54, s2, {sW}"); a.e("s_cmp_lg_u32 s54, 0"); a.e(f"s_cbranch_scc1 {lab}")
        a.track = False
        a.e("s_or_b32 s93, s93, 0x40000000")
        a.e("v_mov_b32 v2, s92"); a.e("v_mov_b32 v3, s93"); a.e("v_mov_b32 v4, 0")
        a.e("s_mov_b64 exec, 1")
        a.e(f"buffer_store_dwordx2 v[2:3], v4, {DBG}, 0 offen sc1")
        a.e("s_mov_b64 exec, -1")
        a.track = True
        a.label(lab)
        for i, p in enumerate(SRD_PTR):
            if i != 9: a.e(f"s_mov_b64 s[{4+4*i}:{5+4*i}], s[{p}:{p+1}]")
    def ln_block(self, pre):
        a = self.a
        LH = 131072
        R = (128, 132)
        a.e(f"s_mul_i32 s54, {sW}, 1088"); a.e(f"s_add_u32 s54, s54, {LH}"); a.e("v_add_u32 v136, s54, v6")
        a.e("v_bfe_u32 v137, v1, 2, 2"); a.e("v_lshrrev_b32 v138, 5, v1"); a.e("v_lshl_add_u32 v137, v138, 3, v137"); a.e("v_mul_u32_u24 v137, 1088, v137")
        a.e("v_bfe_u32 v139, v1, 4, 1"); a.e("v_lshl_add_u32 v137, v139, 5, v137"); a.e("v_and_b32 v138, 3, v1"); a.e("v_lshl_add_u32 v137, v138, 3, v137")
        a.e(f"s_lshl_b32 s54, {sW}, 7"); a.e(f"s_add_u32 s54, s54, {LH}"); a.e("v_add_u32 v137, s54, v137")
        a.e("v_mov_b32 v139, v6")
        a.e("s_lshl_b32 s88, s62, 10"); a.e(f"s_lshl_b32 s54, {sW}, 18"); a.e("s_add_u32 s88, s88, s54"); a.e(f"s_add_u32 s88, s88, {HF_OFF}")
        a.e("s_add_u32 s87, s88, 0x20000")
        a.e("s_lshl_b32 s86, s62, 7"); a.e(f"s_lshl_b32 s54, {sW}, 3"); a.e("s_add_u32 s86, s86, s54"); a.e(f"s_add_u32 s86, s86, {ST_OFF}")
        a.e(f"v_mov_b32 v140, {f2h(1e-5)}")
        pre()
        a.wait(v=("xrow",))
        self.stamp(1)
        self.nonce_issue(22, 4)
        T = (144, 152); S1 = (160, 162); S2 = (161, 163)
        for r in range(2): self.unpack(T[r], R[r], 4)
        for r in range(2): a.e(f"v_readfirstlane_b32 s{90+r}, v{T[r]}")
        for r in range(2): a.e(f"v_mov_b32 v{141+r}, s{90+r}")
        for i in range(8):
            for r in range(2): a.e(f"v_sub_f32 v{T[r]+i}, v{T[r]+i}, v{141+r}")
        for r in range(2):
            a.e(f"v_add_f32 v{S1[r]}, v{T[r]}, v{T[r]+1}"); a.e(f"v_mul_f32 v{S2[r]}, v{T[r]}, v{T[r]}")
        for i in range(1, 8):
            for r in range(2):
                if i >= 2: a.e(f"v_add_f32 v{S1[r]}, v{S1[r]}, v{T[r]+i}")
                a.e(f"v_fmac_f32 v{S2[r]}, v{T[r]+i}, v{T[r]+i}")
        a.e("v_permlane16_swap_b32 v160, v161"); a.e("v_permlane16_swap_b32 v162, v163")
        a.e("v_add_f32 v160, v160, v161"); a.e("v_add_f32 v162, v162, v163")
        a.e("v_permlane32_swap_b32 v160, v162"); a.e("v_add_f32 v160, v160, v162")
        for ctl in ("quad_perm:[1,0,3,2]", "quad_perm:[2,3,0,1]", "row_half_mirror", "row_mirror"):
            a.e(f"v_add_f32_dpp v160, v160, v160 {ctl} row_mask:0xf bank_mask:0xf")
        a.e("v_mul_f32 v160, 0x3b000000, v160")
        for q in range(4): a.e(f"v_readlane_b32 s{92+q}, v160, {16*q}")
        for r in range(2):
            b = 160 + 5 * r
            a.e(f"v_mov_b32 v{b}, s{92+2*r}")
            a.e(f"v_fma_f32 v{b+1}, -v{b}, v{b}, s{93+2*r}"); a.e(f"v_max_f32 v{b+1}, 0, v{b+1}")
            a.e(f"v_add_f32 v{b+2}, v140, v{b+1}"); a.e(f"v_fmac_f32 v{b+1}, v{b+2}, v140")
        for r in range(2):
            b = 160 + 5 * r
            a.e(f"v_rsq_f32 v{b+1}, v{b+1}")
        for r in range(2):
            b = 160 + 5 * r
            a.e(f"v_rsq_f32 v{129+2*r}, v{b+2}"); a.e(f"v_add_f32 v{128+2*r}, v{141+r}, v{b}"); a.e(f"v_mul_f32 v{b}, v{b}, v{b+1}")
        for r in range(2):
            b = 160 + 5 * r
            for i in range(8): a.e(f"v_fma_f32 v{T[r]+i}, v{T[r]+i}, v{b+1}, -v{b}")
            self.pack(T[r], T[r], 4)
            a.e(f"ds_write_b128 v136, v[{T[r]}:{T[r]+3}] offset:{r*8*1088}")
        a.e("s_mov_b64 exec, 1")
        for r in range(2): a.e(f"buffer_store_dwordx2 v[{128+2*r}:{129+2*r}], v4, {WS}, s86 offen offset:{64*r} sc1", tag="lnst")
        a.e("s_mov_b64 exec, -1")
        a.e("s_waitcnt lgkmcnt(0)"); a.e("s_barrier")
        for n in range(2):
            a.e(f"ds_read_b64_tr_b16 v[{144+4*n}:{145+4*n}], v137 offset:{64*n}"); a.e(f"ds_read_b64_tr_b16 v[{146+4*n}:{147+4*n}], v137 offset:{64*n+4*1088}")
        a.e("s_waitcnt lgkmcnt(2)")
        a.e(f"buffer_store_dwordx4 v[144:147], v139, {WS}, s88 offen sc1", tag="lnst")
        a.e("s_waitcnt lgkmcnt(0)")
        a.e(f"buffer_store_dwordx4 v[148:151], v139, {WS}, s87 offen sc1", tag="lnst")
        self.stamp(2)
    def feat(self, P, Gm, t, vsc, norm=True):
        a = self.a
        M0, M1, S0, S1 = t, t + 1, t + 2, t + 3
        a.e(f"v_max3_f32 v{M0}, v{P}, v{P+1}, v{P+2}"); a.e(f"v_min3_f32 v{M1}, v{P}, v{P+1}, v{P+2}")
        a.e(f"v_max3_f32 v{M0}, v{M0}, v{P+3}, v{P+4}"); a.e(f"v_min3_f32 v{M1}, v{M1}, v{P+3}, v{P+4}")
        a.e(f"v_max3_f32 v{M0}, v{M0}, v{P+5}, v{P+6}"); a.e(f"v_min3_f32 v{M1}, v{M1}, v{P+5}, v{P+6}")
        a.e(f"v_max_f32 v{M0}, v{M0}, v{P+7}"); a.e(f"v_max_f32 v{M1}, -v{M1}, -v{P+7}")
        a.e(f"v_permlane32_swap_b32 v{M0}, v{M1}"); a.e(f"v_max_f32 v{M0}, v{M0}, v{M1}")
        a.e(f"v_mul_f32 v{M0}, v{vsc}, v{M0}")
        a.e(f"v_mov_b32 v{M1}, v{M0}"); a.e(f"v_permlane32_swap_b32 v{M0}, v{M1}")
        for i in range(8):
            a.e(f"v_fma_f32 v{Gm+i}, v{P+i}, v{vsc}, -v{M0}"); a.e(f"v_fma_f32 v{P+i}, -v{P+i}, v{vsc}, -v{M1}")
        for i in range(8):
            a.e(f"v_exp_f32 v{Gm+i}, v{Gm+i}"); a.e(f"v_exp_f32 v{P+i}, v{P+i}")
        a.e(f"v_add_f32 v{S0}, v{Gm}, v{Gm+1}"); a.e(f"v_add_f32 v{S1}, v{P}, v{P+1}")
        for i in range(2, 8):
            a.e(f"v_add_f32 v{S0}, v{S0}, v{Gm+i}"); a.e(f"v_add_f32 v{S1}, v{S1}, v{P+i}")
        a.e(f"v_permlane32_swap_b32 v{S0}, v{S1}"); a.e(f"v_add_f32 v{S0}, v{S0}, v{S1}")
        a.e(f"v_rcp_f32 v{S0}, v{S0}")
        a.e(f"v_mov_b32 v{S1}, v{S0}"); a.e(f"v_permlane32_swap_b32 v{S0}, v{S1}")
        for i in range(8):
            a.e(f"v_mul_f32 v{Gm+i}, v{Gm+i}, v{S0}"); a.e(f"v_mul_f32 v{P+i}, v{P+i}, v{S1}")
    def lds_sync(self, vaddr, target, t):
        a = self.a
        lp = a.newlabel("Lls"); dn = a.newlabel("Lld")
        a.e(f"v_mov_b32 v{t}, 1"); a.e("s_mov_b64 exec, 1"); a.e(f"ds_add_u32 {vaddr}, v{t}"); a.e("s_mov_b64 exec, -1")
        a.e("s_mov_b32 s96, 0")
        a.label(lp)
        a.e(f"ds_read_b32 v{t}, {vaddr}"); a.e("s_waitcnt lgkmcnt(0)"); a.e(f"v_readfirstlane_b32 s95, v{t}")
        a.e(f"s_cmp_ge_u32 s95, {target}"); a.e(f"s_cbranch_scc1 {dn}")
        a.e("s_add_u32 s96, s96, 1"); a.e("s_cmp_lt_u32 s96, 1000000"); a.e(f"s_cbranch_scc1 {lp}")
        a.label(dn)
    def p2_ids(self):
        a = self.a
        a.e(f"s_and_b32 s100, {sG}, 1"); a.e("s_lshl_b32 s100, s100, 2"); a.e(f"s_lshr_b32 s54, {sJ}, 3"); a.e("s_add_u32 s100, s100, s54")
        a.e(f"s_lshr_b32 s101, {sG}, 1"); a.e("s_lshl_b32 s101, s101, 3"); a.e(f"s_and_b32 s55, {sJ}, 7"); a.e("s_add_u32 s101, s101, s55")
        a.e("s_lshl_b32 s97, s54, 1"); a.e("s_add_u32 s97, s97, s55")
        a.e("s_lshl_b32 s54, s54, 1"); a.e(f"s_and_b32 s3, {sG}, 1"); a.e("s_add_u32 s54, s54, s3"); a.e("s_add_u32 s54, s54, s55"); a.e("s_and_b32 s54, s54, 7")
        a.e("s_mul_i32 s3, s54, 11"); a.e("s_lshr_b32 s3, s3, 2")
        a.e("s_cmp_ge_u32 s3, 22"); a.e("s_cselect_b32 s54, 22, 0"); a.e("s_sub_u32 s3, s3, s54")
    def p2_voff(self, nw):
        a = self.a
        a.e("v_bfe_u32 v2, v1, 4, 1"); a.e("v_lshlrev_b32 v2, 2, v2"); a.e("v_and_b32 v3, 7, v1"); a.e("v_xor_b32 v2, v2, v3"); a.e("v_lshlrev_b32 v2, 4, v2")
        a.e("v_lshrrev_b32 v3, 3, v1")
        if nw == 8: a.e(f"s_mov_b32 s68, {sW}")
        else: a.e(f"s_and_b32 s68, {sW}, 3"); a.e("s_lshl_b32 s68, s68, 1")
        a.e("s_lshl_b32 s69, s68, 10")
        a.e("v_lshl_add_u32 v60, v3, 12, v2"); a.e("s_lshl_b32 s54, s68, 15"); a.e("s_lshl_b32 s55, s101, 7"); a.e("s_add_u32 s54, s54, s55")
        a.e("v_add_u32 v60, s54, v60")
        if nw == 4:
            a.e("v_add_u32 v61, 0x8000, v60")
            a.e("v_lshl_add_u32 v62, v3, 10, v2"); a.e("s_lshl_b32 s54, s68, 13"); a.e("s_lshl_b32 s55, s100, 7"); a.e("s_add_u32 s54, s54, s55")
            a.e("v_add_u32 v62, s54, v62"); a.e("v_add_u32 v63, 0x2000, v62")
    def p2_rot(self, dst, n):
        a = self.a
        a.e(f"s_add_u32 {dst}, s3, {n}"); a.e(f"s_cmp_ge_u32 {dst}, 22"); a.e("s_cselect_b32 s54, 22, 0"); a.e(f"s_sub_u32 {dst}, {dst}, s54")
    def p2_w2(self, n, slot, i, tag=None):
        a = self.a
        if i == 0: self.p2_rot("s68", n); a.e("s_lshl_b32 s68, s68, 18")
        a.e(f"s_add_u32 m0, s69, {slot*8192 + i*1024}")
        a.e(f"buffer_load_dwordx4 v{60+i}, {W2}, s68 offen lds", tag=tag or f"w2_{n}")
    def p2_early(self, n, i): self.p2_w2(n, 4 + n, i)
    def role_a(self):
        a = self.a
        sTB, sHG, sROT, sTG, sHP = "s56", "s57", "s51", "s58", "s59"
        XR, AK, AV, AQ, WF = 128, 64, 80, 96, 112
        CS = 149504
        a.e(f"s_lshr_b32 {sTB}, {sG}, 1"); a.e(f"s_lshl_b32 {sTB}, {sTB}, 2"); a.e(f"s_and_b32 s54, {sJ}, 3"); a.e(f"s_add_u32 {sTB}, {sTB}, s54")
        a.e(f"s_and_b32 {sHG}, {sG}, 1"); a.e(f"s_lshl_b32 {sHG}, {sHG}, 2"); a.e(f"s_lshr_b32 s55, {sJ}, 2"); a.e(f"s_add_u32 {sHG}, {sHG}, s55")
        a.e(f"s_add_u32 {sROT}, s55, s54"); a.e(f"s_lshl_b32 {sROT}, {sROT}, 1"); a.e(f"s_and_b32 s54, {sG}, 1"); a.e(f"s_add_u32 {sROT}, {sROT}, s54")
        a.e(f"s_lshl_b32 s62, {sTB}, 3"); a.e(f"s_add_u32 s62, s62, {sHG}")
        a.e("s_lshl_b32 s54, s62, 4"); a.e(f"s_add_u32 s54, s54, {sW}"); a.e("s_lshl_b32 s54, s54, 10"); a.e("s_add_u32 s55, s54, 8192")
        a.e(f"buffer_load_dwordx4 v[128:131], v6, {X}, s54 offen", tag="xrow"); a.e(f"buffer_load_dwordx4 v[132:135], v6, {X}, s55 offen", tag="xrow")
        a.e(f"s_and_b32 {sTG}, {sW}, 3"); a.e(f"s_lshr_b32 {sHP}, {sW}, 2")
        a.e("v_lshrrev_b32 v2, 3, v1"); a.e("v_and_b32 v3, 7, v1"); a.e("v_lshrrev_b32 v5, 4, v1"); a.e("v_xor_b32 v5, v5, v3")
        a.e("v_lshlrev_b32 v8, 10, v2"); a.e("v_lshl_add_u32 v8, v5, 4, v8")
        a.e(f"s_lshl_b32 s54, {sTB}, 17"); a.e(f"s_lshl_b32 s55, {sW}, 14"); a.e("s_add_u32 s54, s54, s55")
        a.e("v_add_u32 v8, s54, v8"); a.e("v_xor_b32 v9, 64, v8"); a.e("v_add_u32 v9, 0x2000, v9")
        a.e("v_mul_u32_u24 v5, 3072, v2"); a.e("v_bfe_u32 v2, v1, 4, 1"); a.e("v_lshlrev_b32 v2, 2, v2"); a.e("v_xor_b32 v2, v2, v3")
        a.e("v_lshl_add_u32 v5, v2, 4, v5"); a.e(f"s_lshl_b32 s55, {sHG}, 7"); a.e(f"s_mul_i32 s54, {sW}, 24576"); a.e("s_add_u32 s55, s55, s54"); a.e("v_add_u32 v5, s55, v5")
        a.e("v_add_u32 v10, 1024, v5"); a.e("v_add_u32 v11, 2048, v5")
        a.e(f"s_lshl_b32 s64, {sW}, 11"); a.e(f"s_lshl_b32 s67, {sW}, 10")
        for c in range(8):
            a.e(f"s_add_u32 s65, {sROT}, {c}"); a.e("s_and_b32 s65, s65, 7"); a.e(f"s_lshl_b32 s{70+c}, s65, 7"); a.e(f"s_mul_i32 s{78+c}, s65, {64*3072}")
        def dma(c, i):
            if c < 8:
                if i < 2:
                    a.e(f"s_add_u32 m0, s64, {(c % 4)*16384 + i*1024}")
                    a.e(f"buffer_load_dwordx4 v{8+i}, {X}, s{70+c} offen lds", tag=f"d{c}")
                else:
                    a.e(f"s_add_u32 m0, s67, {65536 + (c % 4)*16384 + (i-2)*8192}")
                    a.e(f"buffer_load_dwordx4 v{8+i}, {WQKV}, s{78+c} offen lds", tag=f"d{c}")
            else:
                sl = c - 8
                qc = (i >> 1) * 4 + 2 * sl + (i & 1)
                a.e(f"s_add_u32 m0, s67, {qaddr(qc)}")
                a.e(f"buffer_load_dwordx4 v5, {WQKV}, s{78+qc} offen lds", tag=f"d{c}")
        def qaddr(qc): return (qc >> 2) * 65536 + (qc & 3) * 8192
        def dma4(c):
            for i in (0, 2, 1, 3): dma(c, i)
        def pre():
            a.e("s_lshl_b32 s61, s62, 7"); a.e(f"s_add_u32 s63, s61, {FL_KV}"); a.e(f"s_add_u32 s61, s61, {FL_O}")
            a.e("v_lshrrev_b32 v3, 5, v1")
            a.e("v_bfe_u32 v2, v1, 4, 1"); a.e("v_lshlrev_b32 v2, 9, v2"); a.e("v_and_b32 v4, 15, v1"); a.e("v_lshl_add_u32 v2, v4, 1, v2")
            a.e("v_lshl_add_u32 v2, v3, 7, v2"); a.e(f"s_lshl_b32 s54, {sHG}, 11"); a.e(f"s_lshl_b32 s55, {sHP}, 10"); a.e("s_add_u32 s54, s54, s55")
            for jj in range(8):
                a.e(f"buffer_load_ushort v{96+jj}, v2, {WPHI}, s54 offen offset:{((jj>>2)*8 + (jj&3))*32}", tag="wphi")
            a.e("s_mov_b32 s89, 0x3f803f80")
            a.e("v_bfe_u32 v2, v1, 2, 2"); a.e("v_lshl_add_u32 v4, v3, 3, v2"); a.e("v_lshlrev_b32 v16, 7, v4")
            a.e("v_lshrrev_b32 v2, 1, v2"); a.e(f"v_xor_b32 v2, {sHP}, v2"); a.e("v_lshl_add_u32 v16, v2, 6, v16")
            a.e("v_bfe_u32 v2, v1, 4, 1"); a.e("v_lshl_add_u32 v16, v2, 5, v16"); a.e("v_and_b32 v2, 3, v1"); a.e("v_lshl_add_u32 v16, v2, 3, v16")
            a.e("v_add_u32 v17, 0x10000, v16")
            a.e(f"s_lshl_b32 s54, {sTG}, 11"); a.e("v_add_u32 v18, s54, v16"); a.e("v_add_u32 v19, s54, v17")
            a.e("v_and_b32 v2, 31, v1"); a.e("v_lshlrev_b32 v2, 7, v2"); a.e(f"s_lshl_b32 s54, {sTG}, 12"); a.e("v_add_u32 v2, s54, v2")
            a.e("v_bfe_u32 v4, v1, 1, 3"); a.e("v_xor_b32 v4, v4, v3")
            for ks in range(4):
                a.e(f"v_xor_b32 v20, {2*ks}, v4"); a.e(f"v_lshl_add_u32 v{12+ks}, v20, 4, v2")
            for i in range(3): a.e(f"v_mov_b32 v{28+i}, 0")
            a.e(f"v_mov_b32 v2, {LDS_BYTES-4}"); a.e("ds_write_b32 v2, v28")
            a.e("v_and_b32 v2, 31, v1"); a.e("v_lshlrev_b32 v2, 5, v2"); a.e(f"s_lshl_b32 s54, {sHP}, 10"); a.e(f"s_add_u32 s54, s54, {CS}"); a.e("v_add_u32 v2, s54, v2")
            a.e("v_lshl_add_u32 v21, v3, 4, v2"); a.e("v_lshl_add_u32 v20, v3, 2, v2"); a.e(f"s_lshl_b32 s54, {sTG}, 3"); a.e("v_add_u32 v20, s54, v20")
            a.e("v_and_b32 v2, 1, v1"); a.e(f"s_lshl_b32 s54, {sTB}, 3"); a.e(f"s_lshl_b32 s55, {sTG}, 1"); a.e("s_add_u32 s54, s54, s55"); a.e("v_add_u32 v2, s54, v2")
            a.e("s_lshl_b32 s60, s54, 7"); a.e(f"s_add_u32 s60, s60, {ST_OFF}")
            a.e(f"s_add_u32 s54, {sHG}, 128"); a.e("v_mov_b32 v3, s54"); a.e("v_cmp_gt_u32 vcc, 2, v1"); a.e("v_cndmask_b32 v2, v3, v2, vcc")
            a.e("v_lshlrev_b32 v31, 7, v2"); a.e(f"v_add_u32 v31, {FL_LN}, v31")
            self.p2_ids()
        self.ln_block(pre)
        dma4(0)
        self.nonce_get(22, 4)
        a.e("s_lshl_b32 s86, s62, 7"); a.e(f"s_add_u32 s86, s86, {FL_LN}")
        a.wait(v=("lnst",)); a.e("s_barrier")
        self.flag_store("s86"); self.stamp(3)
        dma4(1); dma4(2)
        self.stamp(4)
        def fb(j, m): return (112 if m == 0 else 40) + 4 * (j % 4)
        def kvread(j):
            c, ks = j >> 2, j & 3
            r = XR + 4 * j
            a.e(f"ds_read_b128 v[{r}:{r+3}], v{12+ks} offset:{(c % 4)*16384}", tag=f"f{j}")
            for m in range(2):
                r = fb(j, m); off = (c % 4) * 16384 + m * 8192 + ks * 2048
                a.e(f"ds_read_b64_tr_b16 v[{r}:{r+1}], v17 offset:{off}", tag=f"f{j}"); a.e(f"ds_read_b64_tr_b16 v[{r+2}:{r+3}], v17 offset:{off+512}", tag=f"f{j}")
        def csread(vaddr, off, r):
            a.e(f"ds_read_b64_tr_b16 v[{r}:{r+1}], v{vaddr} offset:{off}", tag="cs"); a.e(f"ds_read_b64_tr_b16 v[{r+2}:{r+3}], v{vaddr} offset:{off+512}", tag="cs")
        def csacc(reg, r):
            for i in range(4): a.e(f"v_dot2_f32_bf16 v{reg}, v{r+i}, s89, v{reg}")
        pend = []
        for j in range(32):
            c, ks = j >> 2, j & 3
            if ks == 0:
                self.stamp(16 + c, fine=True)
                a.wait(v=(f"d{c}", f"d{c+1}") if c < 7 else ("d7",))
                a.e("s_barrier")
                if c == 0: kvread(0); kvread(1)
                if c + 3 < 10 and (c + 3 < 8 or c >= 5): pend = [(c + 3, i) for i in (0, 2, 1, 3)]
                csread(19, (c % 4) * 16384, 32); csread(19, (c % 4) * 16384 + 8192, 36)
                if c == 1:
                    a.wait(v=("wphi",))
                    for i in range(4): a.e(f"v_lshl_or_b32 v{24+i}, v{97+2*i}, 16, v{96+2*i}")
                if c == 5: self.poll_issue("v31", 22, "pf")
                if c == 6:
                    self.poll_check("v31", 22, "pf")
                    a.e("v_and_b32 v2, 31, v1"); a.e("v_lshlrev_b32 v2, 3, v2")
                    a.e(f"buffer_load_dwordx2 v[22:23], v2, {WS}, s60 offen sc1", tag="stat")
            if j + 2 < 32: kvread(j + 2)
            a.wait(l=(f"f{j}",))
            for m in range(2):
                acc = (AK, AV)[m]; r = fb(j, m)
                a.e(f"v_mfma_f32_32x32x16_bf16 v[{acc}:{acc+15}], v[{r}:{r+3}], v[{XR+4*j}:{XR+4*j+3}], " + ("0" if j == 0 else f"v[{acc}:{acc+15}]"))
                if m == 0 and pend: dma(*pend.pop(0))
            if ks == 2: a.wait(l=("cs",)); csacc(28, 32); csacc(29, 36)
        self.stamp(5)
        a.e("ds_write_b32 v20, v28"); a.e("ds_write_b32 v20, v29 offset:2048")
        PKB, VB = 32768, 98304
        a.e("v_and_b32 v3, 31, v1"); a.e("v_lshlrev_b32 v3, 6, v3"); a.e(f"s_lshl_b32 s54, {sTG}, 11"); a.e("v_add_u32 v3, s54, v3")
        a.e("v_bfe_u32 v4, v1, 1, 3"); a.e("v_lshrrev_b32 v2, 5, v1"); a.e("v_xor_b32 v4, v4, v2")
        a.e(f"s_lshl_b32 s54, {sHP}, 14"); a.e(f"s_add_u32 s54, s54, {PKB}"); a.e(f"s_lshl_b32 s55, {sHP}, 13"); a.e(f"s_add_u32 s55, s55, {VB}")
        for q in range(4):
            a.e(f"v_xor_b32 v{12+q}, {2*q}, v4"); a.e(f"v_lshl_add_u32 v{12+q}, v{12+q}, 3, v3")
            a.e(f"v_add_u32 v{8+q}, s55, v{12+q}"); a.e(f"v_add_u32 v{12+q}, s54, v{12+q}")
        def correct(items, t):
            for n, (ci, acc) in enumerate(items): a.e(f"ds_read_b128 v[{t+8+8*n}:{t+11+8*n}], v21 offset:{ci*2048}")
            a.e("s_waitcnt lgkmcnt(0)")
            for n, (ci, acc) in enumerate(items):
                c = t + 8 + 8 * n; b = t + 4 + 8 * n
                a.e(f"v_add_f32 v{c}, v{c}, v{c+1}"); a.e(f"v_add_f32 v{c+2}, v{c+2}, v{c+3}"); a.e(f"v_add_f32 v{c}, v{c}, v{c+2}")
                a.e(f"v_cvt_pk_bf16_f32 v{b+2}, v{c}, v{c}"); a.e(f"v_and_b32 v{b+2}, 0xffff0000, v{b+2}")
                a.e(f"v_sub_f32 v{c}, v{c}, v{b+2}"); a.e(f"v_cvt_pk_bf16_f32 v{b}, v{b+2}, v{c}")
                a.e(f"v_and_b32 v{b+3}, 0xffff0000, v{b}"); a.e(f"v_sub_f32 v{c}, v{c}, v{b+3}"); a.e(f"v_cvt_pk_bf16_f32 v{b+1}, v{b+2}, v{c}")
                a.e(f"v_mfma_f32_32x32x16_bf16 v[{acc}:{acc+15}], v[{b}:{b+3}], v[56:59], v[{acc}:{acc+15}]")
        a.wait(v=("stat",))
        self.stamp(24, fine=True)
        a.e("v_sub_f32 v56, 0, v22"); a.e("v_cvt_pk_bf16_f32 v56, v56, v56"); a.e("v_and_b32 v57, 0xffff0000, v56")
        a.e("v_add_f32 v58, v22, v57"); a.e("v_sub_f32 v58, 0, v58"); a.e("v_cvt_pk_bf16_f32 v57, v58, v57")
        a.e("v_mov_b32 v58, 0"); a.e("v_mov_b32 v59, 0")
        a.e(f"v_mul_f32 v22, {f2h(LOG2E)}, v23")
        a.e("s_waitcnt lgkmcnt(0)"); a.e("s_barrier")
        self.stamp(25, fine=True)
        correct([(0, AK), (1, AV)], 32)
        self.stamp(26, fine=True)
        self.pack(AK, AK, 8)
        def feats(src, store):
            a.e(f"v_mfma_f32_32x32x16_bf16 v[96:111], v[24:27], v[{src}:{src+3}], 0")
            a.e(f"v_mfma_f32_32x32x16_bf16 v[112:127], v[24:27], v[{src+4}:{src+7}], 0")
            l0 = self.capture(lambda: (self.feat(96, 104, 32, 22), store(0, 96, 104)))
            l1 = self.capture(lambda: (self.feat(120, 112, 36, 22), store(1, 120, 112)))
            return [x for p in zip(l0, l1) for x in p]
        def store_k(hh, P, Gm):
            self.pack(Gm, Gm, 4); self.pack(Gm + 4, P, 4)
            for q in range(4): a.e(f"ds_write_b64 v{12+q}, v[{Gm+2*q}:{Gm+2*q+1}] offset:{hh*8192}")
        a.e("v_lshrrev_b32 v2, 3, v1"); a.e("v_lshlrev_b32 v2, 12, v2"); a.e("v_and_b32 v3, 7, v1"); a.e("v_lshl_add_u32 v61, v3, 7, v2")
        a.e(f"s_mul_i32 s66, {sJ}, {86*4096}"); a.e(f"s_lshr_b32 s54, {sG}, 1"); a.e("s_lshl_b32 s54, s54, 10"); a.e("s_add_u32 s66, s66, s54")
        a.e(f"s_lshl_b32 s54, {sW}, 14"); a.e("s_add_u32 s54, s54, s66")
        if TOUCH:
            a.e("s_mov_b64 exec, 0xffffffff")
            a.e(f"buffer_load_dword v62, v61, {W2}, s54 offen", tag="touch")
            a.e("s_mov_b64 exec, -1")
        fl = feats(AK, store_k)
        for i in range(16): a.e(f"v_mul_f32 v{AV+i}, v{AV+i}, v23")
        self.pack(AV, AV, 8)
        for q in range(4): a.e(f"ds_write_b64 v{8+q}, v[{AV+2*q}:{AV+2*q+1}]")
        for s_, t_ in fl: a.e(s_, tag=t_)
        self.stamp(27, fine=True)
        a.e("v_bfe_u32 v2, v1, 2, 2"); a.e("v_lshrrev_b32 v3, 5, v1"); a.e("v_lshl_add_u32 v4, v3, 3, v2")
        a.e("v_lshrrev_b32 v32, 1, v4"); a.e("v_lshlrev_b32 v4, 6, v4")
        a.e("v_and_b32 v33, 3, v1"); a.e("v_bfe_u32 v34, v1, 4, 1"); a.e("v_lshl_add_u32 v34, v34, 2, v33")
        a.e(f"s_and_b32 s54, {sW}, 1"); a.e("s_lshl_b32 s54, s54, 2"); a.e("v_add_u32 v33, s54, v33")
        a.e(f"s_lshl_b32 s54, {sTG}, 13"); a.e(f"s_add_u32 s54, s54, {PKB}"); a.e(f"s_lshr_b32 s55, {sTG}, 1"); a.e("s_lshl_b32 s55, s55, 13"); a.e(f"s_add_u32 s55, s55, {VB}")
        a.e("v_xor_b32 v34, v34, v32"); a.e("v_xor_b32 v33, v33, v32")
        a.e("v_lshl_add_u32 v36, v34, 3, v4"); a.e("v_add_u32 v36, s54, v36"); a.e("v_xor_b32 v37, 16, v36")
        a.e("v_lshl_add_u32 v38, v33, 3, v4"); a.e("v_add_u32 v38, s55, v38"); a.e("v_xor_b32 v39, 16, v38")
        a.e("v_and_b32 v35, 31, v1"); a.e("v_lshlrev_b32 v35, 2, v35"); a.e("v_lshl_add_u32 v35, v3, 9, v35")
        a.e(f"s_lshl_b32 s60, {sHG}, 14"); a.e(f"s_mul_i32 s55, {sTG}, 2176"); a.e("s_add_u32 s60, s60, s55"); a.e(f"s_add_u32 s60, s60, {KV_OFF}")
        a.e("v_and_b32 v2, 16, v1"); a.e("v_cmp_eq_u32 vcc, 0, v2"); a.e("v_mov_b32 v32, s89")
        a.wait(v=("d8", "d9"))
        a.e("s_waitcnt lgkmcnt(0)"); a.e("s_barrier")
        self.stamp(6)
        lab = a.newlabel("Lkv")
        a.e(f"s_cmp_gt_u32 {sW}, 3"); a.e(f"s_cbranch_scc1 {lab}")
        for k in range(8):
            b = 64 + 8 * k
            a.e(f"ds_read_b64_tr_b16 v[{b}:{b+1}], v38 offset:{k*1024}", tag=f"k{k}"); a.e(f"ds_read_b64_tr_b16 v[{b+2}:{b+3}], v39 offset:{k*1024+256}", tag=f"k{k}")
            a.e(f"ds_read_b64_tr_b16 v[{b+4}:{b+5}], v36 offset:{k*1024}", tag=f"k{k}"); a.e(f"ds_read_b64_tr_b16 v[{b+6}:{b+7}], v37 offset:{k*1024+256}", tag=f"k{k}")
        for k in range(8):
            b = 64 + 8 * k
            a.wait(l=(f"k{k}",))
            for i in range(4): a.e(f"v_cndmask_b32 v{b+i}, v32, v{b+i}, vcc")
            a.e(f"v_mfma_f32_32x32x16_bf16 v[40:55], v[{b}:{b+3}], v[{b+4}:{b+7}], " + ("0" if k == 0 else "v[40:55]"))
        a.track = False
        for r in range(8):
            a.e(f"buffer_atomic_add_f32 v{40+r}, v35, {WS}, s60 offen offset:{(8*(r>>2)+(r&3))*128} sc1")
        a.e("s_mov_b64 exec, 0xffffffff")
        a.e(f"buffer_atomic_add_f32 v48, v35, {WS}, s60 offen offset:2048 sc1")
        a.e("s_mov_b64 exec, -1")
        lab2 = a.newlabel("Lkv2")
        a.e(f"s_branch {lab2}")
        a.label(lab)
        if TOUCH:
            a.e(f"s_lshl_b32 s54, {sW}, 15"); a.e("s_add_u32 s54, s54, s66")
            a.e(f"buffer_load_dword v62, v61, {W2}, s54 offen")
        a.label(lab2)
        a.track = True
        self.stamp(7)
        def qread(j):
            c, ks = j >> 2, j & 3
            r = 112 + 4 * (j % 4); off = (c & 3) * 8192 + ks * 2048; va = 16 + (c >> 2)
            a.e(f"ds_read_b64_tr_b16 v[{r}:{r+1}], v{va} offset:{off}", tag=f"f{j}"); a.e(f"ds_read_b64_tr_b16 v[{r+2}:{r+3}], v{va} offset:{off+512}", tag=f"f{j}")
        for j in range(3): qread(j)
        for j in range(32):
            c, ks = j >> 2, j & 3
            if j == KVJ:
                lk = a.newlabel("Lkf")
                a.e(f"s_cmp_gt_u32 {sW}, 3"); a.e(f"s_cbranch_scc1 {lk}")
                a.track = False
                a.e(f"v_mov_b32 v2, {sN0}"); a.e(f"v_mov_b32 v3, {sN1}"); a.e("v_mov_b32 v4, 0"); a.e("v_mov_b32 v5, 1"); a.e(f"v_mov_b32 v68, {LDS_BYTES-4}")
                a.e("s_waitcnt vmcnt(0)"); a.e("s_mov_b64 exec, 1")
                a.e("ds_add_rtn_u32 v5, v68, v5"); a.e("s_waitcnt lgkmcnt(0)"); a.e("v_readfirstlane_b32 s95, v5")
                lk2 = a.newlabel("Lkf2")
                a.e("s_cmp_lg_u32 s95, 3"); a.e(f"s_cbranch_scc1 {lk2}")
                a.e(f"buffer_store_dwordx2 v[2:3], v4, {WS}, s63 offen sc1")
                a.label(lk2); a.e("s_mov_b64 exec, -1")
                self.stamp(8)
                a.track = True
                a.label(lk)
            if ks == 0: csread(18 + (c >> 2), (c & 3) * 8192, 64)
            if j + 3 < 32: qread(j + 3)
            a.wait(l=(f"f{j}",))
            r = 112 + 4 * (j % 4)
            a.e(f"v_mfma_f32_32x32x16_bf16 v[{AQ}:{AQ+15}], v[{r}:{r+3}], v[{XR+4*j}:{XR+4*j+3}], " + ("0" if j == 0 else f"v[{AQ}:{AQ+15}]"))
            if ks == 3: a.wait(l=("cs",)); csacc(30, 64)
        assert not pend
        self.stamp(28, fine=True)
        a.e("s_nop 2"); a.e("ds_write_b32 v20, v30 offset:4096")
        a.e("v_and_b32 v2, 15, v1"); a.e("v_lshlrev_b32 v2, 3, v2"); a.e(f"v_add_u32 v2, {sHG}, v2")
        a.e("v_lshlrev_b32 v31, 7, v2"); a.e(f"v_add_u32 v31, {FL_KV}, v31")
        a.e("s_waitcnt lgkmcnt(0)"); a.e("s_barrier")
        correct([(2, AQ)], 32)
        self.poll_issue("v31", 28, "pf")
        self.pack(AK, AQ, 8)
        def store_q(hh, P, Gm):
            self.pack(AV + 8 * hh, Gm, 4); self.pack(AV + 8 * hh + 4, P, 4)
        fl = feats(AK, store_q)
        KS = CS + 6144
        half = len(fl) // 2
        for s_, t_ in fl[:half]: a.e(s_, tag=t_)
        self.stamp(29, fine=True)
        self.poll_check("v31", 28, "pf")
        self.stamp(9)
        a.e("v_lshlrev_b32 v2, 4, v0"); a.e(f"s_lshl_b32 s54, {sHG}, 14"); a.e(f"s_add_u32 s54, s54, {KV_OFF}")
        a.e(f"buffer_load_dwordx4 v[40:43], v2, {WS}, s54 offen sc1", tag="kv")
        a.e("s_add_u32 s54, s54, 8192")
        a.e(f"buffer_load_dwordx4 v[44:47], v2, {WS}, s54 offen sc1", tag="kv")
        for s_, t_ in fl[half:]: a.e(s_, tag=t_)
        a.e("v_lshrrev_b32 v3, 3, v0"); a.e("v_mul_u32_u24 v3, 72, v3"); a.e("v_and_b32 v4, 7, v0"); a.e("v_lshl_add_u32 v3, v4, 3, v3"); a.e(f"v_add_u32 v3, {KS}, v3")
        a.e("v_and_b32 v2, 31, v1"); a.e("v_min_u32 v2, 16, v2"); a.e("v_mul_u32_u24 v2, 72, v2"); a.e("v_lshrrev_b32 v4, 5, v1"); a.e("v_lshl_add_u32 v2, v4, 3, v2")
        a.e(f"s_mul_i32 s54, {sHP}, {34*72}"); a.e(f"s_add_u32 s54, s54, {KS}"); a.e("v_add_u32 v2, s54, v2")
        a.e(f"s_lshl_b32 s54, {sTB}, 2"); a.e(f"s_add_u32 s54, s54, {sTG}"); a.e("s_lshl_b32 s54, s54, 15")
        a.e(f"s_lshl_b32 s55, {sHG}, 1"); a.e(f"s_add_u32 s55, s55, {sHP}"); a.e("s_lshl_b32 s55, s55, 11"); a.e("s_add_u32 s54, s54, s55"); a.e(f"s_add_u32 s54, s54, {OF_OFF}")
        self.stamp(30, fine=True)
        a.wait(v=("kv",))
        self.stamp(31, fine=True)
        self.pack(48, 40, 4)
        a.e("ds_write_b64 v3, v[48:49]")
        a.e("v_cmp_gt_u32 vcc, 32, v0"); a.e("s_and_saveexec_b64 s[90:91], vcc")
        a.e(f"ds_write_b64 v3, v[50:51] offset:{64*72}")
        a.e("s_mov_b64 exec, -1")
        a.e("s_waitcnt lgkmcnt(0)"); a.e("s_barrier")
        for hh in range(2):
            for q in range(4):
                r = 128 + 8 * hh + 2 * q
                a.e(f"ds_read_b64 v[{r}:{r+1}], v2 offset:{hh*17*72 + q*16}", tag=f"kf{hh}")
        for hh in range(2):
            a.wait(l=(f"kf{hh}",))
            d = 160 + 16 * hh; r = 128 + 8 * hh; p = AV + 8 * hh
            a.e(f"v_mfma_f32_32x32x16_bf16 v[{d}:{d+15}], v[{r}:{r+3}], v[{p}:{p+3}], 0")
            a.e(f"v_mfma_f32_32x32x16_bf16 v[{d}:{d+15}], v[{r+4}:{r+7}], v[{p+4}:{p+7}], v[{d}:{d+15}]")
        for hh in range(2):
            d = 160 + 16 * hh
            a.e(f"v_add_f32 v{d+8}, {f2h(1e-6)}, v{d+8}"); a.e(f"v_rcp_f32 v{d+8}, v{d+8}")
            for i in range(8): a.e(f"v_mul_f32 v{d+i}, v{d+i}, v{d+8}")
            o = 32 + 4 * hh
            self.pack(o, d, 4)
            a.e(f"buffer_store_dwordx4 v[{o}:{o+3}], v6, {WS}, s54 offen offset:{hh*1024} sc1")
        a.e("s_waitcnt vmcnt(0)"); a.e("s_barrier")
        self.flag_store("s61")
        self.stamp(10)
        self.p2_voff(8)
        for n in range(12): self.p2_early(n, 0)
    def role_b(self):
        a = self.a
        sDB, sFB, sKH, sPH, sROT = "s56", "s57", "s58", "s59", "s51"
        NWS, WSB, NPS, PSB = NWS_, 12288, NPS_, 8192
        PBASE = NWS * WSB; assert PBASE + NPS * PSB <= LDS_BYTES - 64
        CNT = LDS_BYTES - 16
        if BMAP == 24:
            a.e(f"s_lshr_b32 {sFB}, {sG}, 1"); a.e(f"s_lshl_b32 {sFB}, {sFB}, 2"); a.e(f"s_bfe_u32 s54, {sJ}, 0x20002"); a.e(f"s_add_u32 {sFB}, {sFB}, s54")
            a.e(f"s_and_b32 {sDB}, {sG}, 1"); a.e(f"s_lshl_b32 {sDB}, {sDB}, 2"); a.e(f"s_and_b32 s55, {sJ}, 3"); a.e(f"s_add_u32 {sDB}, {sDB}, s55")
            a.e(f"s_add_u32 {sROT}, s54, s55"); a.e(f"s_lshl_b32 {sROT}, {sROT}, 3"); a.e(f"s_and_b32 s54, {sDB}, 4"); a.e(f"s_add_u32 {sROT}, {sROT}, s54")
        else:
            a.e(f"s_lshl_b32 {sFB}, {sG}, 1"); a.e(f"s_bfe_u32 s54, {sJ}, 0x10003"); a.e(f"s_add_u32 {sFB}, {sFB}, s54"); a.e(f"s_and_b32 {sDB}, {sJ}, 7")
            a.e(f"s_lshl_b32 {sROT}, {sDB}, 2"); a.e("s_lshl_b32 s54, s54, 4"); a.e(f"s_add_u32 {sROT}, {sROT}, s54")
        a.e(f"s_cmp_ge_u32 {sFB}, 15"); a.e("s_cbranch_scc1 L_roleS")
        q0 = list(a.vq)
        a.e(f"s_cmp_lt_u32 {sW}, 4"); a.e("s_cbranch_scc1 L_bcons")
        a.e(f"s_and_b32 s67, {sW}, 3")
        a.e(f"s_mul_i32 s54, s67, {16*2752}"); a.e(f"s_mul_i32 s55, {sFB}, 192"); a.e("s_add_u32 s54, s54, s55")
        for i in range(3):
            a.e(f"v_add_u32 v2, {64*i}, v1"); a.e("v_mul_u32_u24 v3, 5462, v2"); a.e("v_lshrrev_b32 v3, 16, v3")
            a.e("v_mul_u32_u24 v4, 12, v3"); a.e("v_sub_u32 v4, v2, v4")
            a.e(f"v_mul_u32_u24 v3, 2752, v3"); a.e(f"v_lshl_add_u32 v{56+i}, v4, 4, v3"); a.e(f"v_add_u32 v{56+i}, s54, v{56+i}")
        a.e("s_mul_i32 s64, s67, 3072")
        def wdma(n):
            a.e(f"s_add_u32 s65, {sROT}, {n}"); a.e("s_and_b32 s65, s65, 31"); a.e(f"s_mul_i32 s65, s65, {64*2752}")
            for i in range(3):
                a.e(f"s_add_u32 m0, s64, {(n % NWS)*WSB + i*1024}")
                a.e(f"buffer_load_dwordx4 v{56+i}, {W1}, s65 offen {'nt ' if n < NT else ''}lds", tag=f"w{n}")
        def pdma(n):
            a.e(f"s_add_u32 s65, {sROT}, {n}"); a.e("s_and_b32 s65, s65, 31"); a.e("s_lshl_b32 s65, s65, 12"); a.e("s_add_u32 s65, s65, s60")
            a.e(f"s_add_u32 m0, s63, {(n % NPS)*PSB}")
            a.e(f"buffer_load_dwordx4 v6, {WS}, s65 offen sc1 lds", tag=f"p{n}")
            a.e(f"buffer_load_dwordx4 v6, {WS}, s65 offen offset:1024 sc1 lds", tag=f"p{n}")
        a.e(f"s_and_b32 s54, {sJ}, 15"); a.e("s_lshl_b32 s54, s54, 2"); a.e("s_add_u32 s54, s54, s67")
        a.e("v_lshrrev_b32 v10, 3, v1"); a.e("v_mul_u32_u24 v10, 3072, v10"); a.e("v_bfe_u32 v11, v1, 2, 1"); a.e("v_lshl_add_u32 v10, v11, 10, v10")
        a.e("v_and_b32 v11, 3, v1"); a.e("v_lshl_add_u32 v10, v11, 7, v10")
        a.e("s_mul_i32 s55, s54, 24576"); a.e(f"s_and_b32 s65, {sG}, 1"); a.e("s_lshl_b32 s65, s65, 9"); a.e("s_add_u32 s55, s55, s65"); a.e("s_add_u32 s55, s55, 1024")
        a.e(f"buffer_load_dword v13, v10, {WQKV}, s55 offen", tag="warm")
        a.e("s_lshr_b32 s55, s54, 4"); a.e("s_lshl_b32 s55, s55, 17"); a.e("s_and_b32 s54, s54, 15"); a.e("s_lshl_b32 s54, s54, 12"); a.e("s_add_u32 s55, s55, s54")
        a.e("s_xor_b32 s65, s65, 512"); a.e("s_lshl_b32 s65, s65, 7"); a.e("s_add_u32 s55, s55, s65"); a.e(f"s_lshr_b32 s65, {sG}, 1"); a.e("s_lshl_b32 s65, s65, 19"); a.e("s_add_u32 s55, s55, s65")
        a.e("v_lshlrev_b32 v10, 7, v1"); a.e("s_mov_b64 exec, 0xffffffff")
        a.e(f"buffer_load_dword v12, v10, {X}, s55 offen", tag="warm")
        a.e("s_mov_b64 exec, -1")
        self.nonce_issue(8, 4)
        a.e(f"s_lshl_b32 s60, {sDB}, 1"); a.e("s_lshr_b32 s54, s67, 1"); a.e("s_add_u32 s60, s60, s54"); a.e("s_lshl_b32 s60, s60, 17")
        a.e("s_and_b32 s54, s67, 1"); a.e("s_lshl_b32 s54, s54, 11"); a.e("s_add_u32 s60, s60, s54"); a.e(f"s_add_u32 s60, s60, {HF_OFF}")
        a.e("s_lshl_b32 s63, s67, 11"); a.e(f"s_add_u32 s63, s63, {PBASE}")
        self.p2_ids(); self.p2_voff(4)
        if WAITW: self.nonce_get(8, 4)
        self.stamp(2)
        for n in range(PRE): wdma(n)
        if not WAITW: self.nonce_get(8, 4)
        self.stamp(3)
        a.e("s_barrier")
        for n in range(NPS - 1): pdma(n)
        a.wait(v=("p0", "p1"))
        a.e("s_barrier")
        LASTB = 32 - NPS + 2
        nw = PRE
        for t in range(LASTB):
            if t + NPS - 1 < 32: pdma(t + NPS - 1)
            k = 0
            while nw < 32 and nw <= t + NWS - 1 and k < 2: wdma(nw); nw += 1; k += 1
            a.wait(v=(f"p{t+2}", f"w{t+2}") + (("p31", "w31") if t == LASTB - 1 else ()))
            a.e("s_barrier")
        assert nw == 32
        busy = [(n % NWS * WSB, WSB) for n in range(LASTB, 32)] + [(PBASE + n % NPS * PSB, PSB) for n in range(LASTB, 32)]
        def free(lo, ln, extra=()): return all(lo + ln <= b or b + l <= lo for b, l in list(busy) + list(extra))
        X0 = [x for x in range(0, 20481, 4096) if free(x, 12288)][0]
        X1 = [x for x in list(range(131072, 147457, 4096)) + list(range(0, 20481, 4096)) if free(x, 12288, [(X0, 12288)])][0]
        XCH = (X0, X1)
        first = [n for n in range(12) if free((4 + n) * 8192, 8192)]
        for n in first: self.p2_early(n, 0); self.p2_early(n, 1)
        a.e(f"v_mov_b32 v25, {CNT}")
        lp = a.newlabel("Lbw"); dn = a.newlabel("Lbd")
        a.e("s_mov_b32 s96, 0"); a.label(lp)
        a.e("ds_read_b32 v2, v25"); a.e("s_waitcnt lgkmcnt(0)"); a.e("v_readfirstlane_b32 s95, v2")
        a.e("s_cmp_ge_u32 s95, 4"); a.e(f"s_cbranch_scc1 {dn}")
        a.e("s_sleep 1"); a.e("s_add_u32 s96, s96, 1"); a.e("s_cmp_lt_u32 s96, 1000000"); a.e(f"s_cbranch_scc1 {lp}")
        a.label(dn)
        for n in range(12):
            if n not in first: self.p2_early(n, 0); self.p2_early(n, 1)
        print("B: LASTB", LASTB, "XCH", XCH, "first", first)
        a.e("s_branch L_phase2")
        a.label("L_bcons"); a.vq = list(q0); a.lq = []
        a.e(f"s_lshr_b32 {sKH}, {sW}, 1"); a.e(f"s_and_b32 {sPH}, {sW}, 1")
        self.nonce_issue(8, 4)
        ACC, FB = 64, 112
        a.e("v_lshrrev_b32 v3, 5, v1"); a.e("v_lshlrev_b32 v2, 3, v3"); a.e(f"s_mul_i32 s54, {sFB}, 192"); a.e(f"s_mul_i32 s55, {sKH}, 96"); a.e("s_add_u32 s54, s54, s55")
        for i in range(6):
            a.e(f"buffer_load_dwordx2 v[{40+2*i}:{41+2*i}], v2, {B1}, s54 offen offset:{16*i}", tag="b1")
        self.p2_ids()
        a.e("v_bfe_u32 v2, v1, 2, 2"); a.e("v_lshl_add_u32 v2, v3, 3, v2"); a.e("v_mul_u32_u24 v2, 192, v2"); a.e("v_and_b32 v5, 3, v1"); a.e("v_lshl_add_u32 v2, v5, 3, v2")
        a.e(f"s_mul_i32 s54, {sKH}, {32*192}"); a.e("v_add_u32 v2, s54, v2")
        a.e("v_bfe_u32 v5, v1, 4, 1"); a.e(f"s_mul_i32 s54, {sKH}, 3"); a.e("v_add_u32 v5, s54, v5")
        for f in range(3):
            a.e(f"v_add_u32 v10, {2*f}, v5"); a.e("v_subrev_u32 v11, 6, v10"); a.e("v_min_u32 v10, v10, v11")
            a.e(f"v_lshl_add_u32 v{16+f}, v10, 5, v2"); a.e(f"v_add_u32 v{19+f}, {5*WSB}, v{16+f}")
        a.e(f"s_lshl_b32 s54, {sPH}, 12"); a.e(f"s_lshl_b32 s55, {sKH}, 11"); a.e("s_add_u32 s54, s54, s55"); a.e(f"s_add_u32 s54, s54, {PBASE}"); a.e("v_add_u32 v22, s54, v6")
        a.e(f"s_mul_i32 s54, {sPH}, 6144"); a.e("v_add_u32 v2, s54, v6"); a.e(f"s_cmp_eq_u32 {sKH}, 0")
        a.e(f"s_cselect_b32 s54, {XCH[0]}, {XCH[1]}") if False else None
        a.e(f"s_mov_b32 s54, {XCH[0]}"); a.e(f"s_mov_b32 s55, {XCH[1]}"); a.e("s_cselect_b32 s65, s54, s55"); a.e("s_cselect_b32 s66, s55, s54")
        a.e("v_add_u32 v23, s65, v2"); a.e("v_add_u32 v24, s66, v2")
        a.e(f"v_mov_b32 v25, {CNT}")
        a.e(f"s_lshl_b32 s60, {sDB}, 1"); a.e(f"s_add_u32 s60, s60, {sPH}"); a.e(f"s_mul_i32 s60, s60, {UPITCH}"); a.e(f"s_mul_i32 s54, {sFB}, 6"); a.e("s_add_u32 s60, s60, s54")
        a.e(f"s_mul_i32 s54, {sKH}, 3"); a.e("s_add_u32 s60, s60, s54"); a.e("s_lshl_b32 s60, s60, 10"); a.e(f"s_add_u32 s60, s60, {UF_OFF}")
        a.e(f"s_mul_i32 s61, {sDB}, 15"); a.e(f"s_add_u32 s61, s61, {sFB}"); a.e("s_lshl_b32 s61, s61, 7"); a.e(f"s_add_u32 s61, s61, {FL_U}")
        c0 = -2.0 * math.sqrt(2.0 / math.pi) * LOG2E
        a.e(f"v_mov_b32 v26, {f2h(c0 * 0.044715)}"); a.e(f"v_mov_b32 v27, {f2h(c0)}")
        a.e("v_and_b32 v2, 31, v1"); a.e(f"s_lshl_b32 s54, {sW}, 5"); a.e("v_add_u32 v2, s54, v2")
        a.e("v_lshlrev_b32 v10, 7, v2"); a.e(f"v_add_u32 v10, {FL_LN}, v10")
        a.wait(v=("b1",))
        self.unpack(ACC, 40, 12)
        for i in range(24): a.e(f"v_mov_b32 v{ACC+24+i}, 0")
        self.nonce_get(8, 4)
        self.poll("v10", nl=32)
        self.stamp(4)
        a.e("s_barrier")
        def rd(j):
            t, ks = j >> 1, j & 1
            b = FB + 16 * (j % 3)
            a.e(f"ds_read_b128 v[{b}:{b+3}], v22 offset:{(t % NPS)*PSB + ks*1024}", tag=f"f{j}")
            sl = t % NWS
            for f in range(3):
                off = (sl % 5) * WSB + ks * 3072; va = 16 + 3 * (sl // 5) + f; r = b + 4 + 4 * f
                a.e(f"ds_read_b64_tr_b16 v[{r}:{r+1}], v{va} offset:{off}", tag=f"f{j}"); a.e(f"ds_read_b64_tr_b16 v[{r+2}:{r+3}], v{va} offset:{off+768}", tag=f"f{j}")
        for j in range(64):
            t, ks = j >> 1, j & 1
            if ks == 0:
                if t % 2 == 0: self.stamp(16 + t // 2, fine=True)
                if t <= LASTB: a.e("s_barrier")
                if t == 0: rd(0); rd(1)
                if t == 1: a.e("v_mov_b32 v2, 0"); a.e("ds_write_b32 v25, v2"); a.e("ds_write_b32 v25, v2 offset:4")
            a.wait(l=(f"f{j}",))
            b = FB + 16 * (j % 3)
            for f in range(3):
                c = ACC + 16 * f
                a.e(f"v_mfma_f32_32x32x16_bf16 v[{c}:{c+15}], v[{b+4+4*f}:{b+7+4*f}], v[{b}:{b+3}], v[{c}:{c+15}]")
                if f == 0 and j + 2 < 64: rd(j + 2)
        self.stamp(5)
        for i in range(6): a.e(f"ds_write_b128 v24, v[{ACC+24+4*i}:{ACC+27+4*i}] offset:{i*1024}")
        a.e("s_waitcnt lgkmcnt(0)")
        self.lds_sync("v25", 4, 2)
        for i in range(6): a.e(f"ds_read_b128 v[{112+4*i}:{115+4*i}], v23 offset:{i*1024}", tag=f"x{i>>1}")
        for u in range(3):
            A = ACC + 8 * u; Pn = 112 + 8 * u; T = 136 + 8 * u
            a.wait(l=(f"x{u}",))
            for i in range(8): a.e(f"v_add_f32 v{A+i}, v{A+i}, v{Pn+i}")
            for i in range(8): a.e(f"v_mul_f32 v{T+i}, v{A+i}, v{A+i}")
            for i in range(8): a.e(f"v_fma_f32 v{T+i}, v{T+i}, v26, v27")
            for i in range(8): a.e(f"v_mul_f32 v{T+i}, v{T+i}, v{A+i}")
            for i in range(8): a.e(f"v_exp_f32 v{T+i}, v{T+i}")
            for i in range(8): a.e(f"v_add_f32 v{T+i}, 1.0, v{T+i}")
            for i in range(8): a.e(f"v_rcp_f32 v{T+i}, v{T+i}")
            for i in range(8): a.e(f"v_mul_f32 v{T+i}, v{T+i}, v{A+i}")
            o = 40 + 4 * u
            self.pack(o, T, 4)
            a.e(f"buffer_store_dwordx4 v[{o}:{o+3}], v6, {WS}, s60 offen offset:{u*1024} sc1")
        self.stamp(6)
        a.e(f"v_mov_b32 v2, {sN0}"); a.e(f"v_mov_b32 v3, {sN1}"); a.e("v_mov_b32 v5, 1")
        a.e("s_mov_b64 exec, 1")
        a.e("s_waitcnt vmcnt(0)")
        a.e("ds_add_rtn_u32 v5, v25, v5 offset:4"); a.e("s_waitcnt lgkmcnt(0)"); a.e("v_readfirstlane_b32 s95, v5")
        lab = a.newlabel("Lnf")
        a.e("s_cmp_lg_u32 s95, 3"); a.e(f"s_cbranch_scc1 {lab}")
        a.e(f"buffer_store_dwordx2 v[2:3], v4, {WS}, s61 offen sc1")
        a.label(lab)
        a.e("s_mov_b64 exec, -1")
        self.stamp(10)
    def role_s(self):
        a = self.a
        self.nonce_issue(8, 4)
        for i in range(4): a.e(f"v_mov_b32 v{28+i}, 0")
        a.e("v_lshlrev_b32 v23, 4, v0"); a.e("s_lshl_b32 s54, s56, 14"); a.e(f"s_add_u32 s54, s54, {KV_OFF}")
        a.e(f"buffer_store_dwordx4 v[28:31], v23, {WS}, s54 offen sc1")
        a.e("s_add_u32 s54, s54, 8192")
        a.e(f"buffer_store_dwordx4 v[28:31], v23, {WS}, s54 offen sc1")
        self.p2_ids(); self.p2_voff(8)
        a.e("s_waitcnt vmcnt(0)")
        self.nonce_get(8, 4)
        a.e("s_barrier")
        a.e("s_add_u32 s54, s56, 128"); a.e("s_lshl_b32 s54, s54, 7"); a.e(f"s_add_u32 s54, s54, {FL_LN}")
        self.flag_store("s54")
        self.stamp(3)
        a.e("v_lshlrev_b32 v10, 7, v1"); a.e(f"v_add_u32 v10, {FL_KV}, v10")
        self.poll("v10", nl=1)
        for n in range(12): self.p2_early(n, 0)
    def phase2(self):
        a = self.a
        a.vq = []; a.lq = []
        sDB, sTB, sKH, sPH = "s100", "s101", "s58", "s59"
        FIN = 4 * 8192
        a.e("v_lshrrev_b32 v2, 3, v0"); a.e("v_and_b32 v3, 7, v0"); a.e("v_lshlrev_b32 v56, 10, v2"); a.e("v_lshl_add_u32 v56, v3, 4, v56")
        a.e(f"s_lshl_b32 s67, {sTB}, 16"); a.e(f"s_lshl_b32 s54, {sDB}, 7"); a.e("s_add_u32 s67, s67, s54")
        a.e(f"buffer_load_dwordx4 v[96:99], v56, {X}, s67 offen", tag="xt")
        a.e("v_lshlrev_b32 v4, 1, v2"); a.e(f"s_lshl_b32 s54, {sTB}, 7")
        a.e(f"buffer_load_ushort v52, v4, {B2}, s54 offen", tag="xt")
        a.e("v_mul_u32_u24 v57, 272, v2"); a.e("v_lshl_add_u32 v57, v3, 5, v57")
        a.e(f"v_mov_b32 v53, {f2h(-LOG2E)}")
        W2SLOT = {n: 4 + n for n in range(12)}; W2SLOT.update({12: 0, 13: 1, 14: 2, 15: 3, 16: 16, 17: 17, 18: 18, 19: 19, 20: 16, 21: 17})
        WOSLOT = {k: 4 + k for k in range(8)}; OSLOT = {k: (12 + k) % 16 for k in range(8)}
        USLOT = lambda n: n % 16
        def fin_read(dst):
            for arr in range(2):
                for hf in range(2):
                    r = dst + 8 * arr + 4 * hf
                    a.e(f"ds_read_b128 v[{r}:{r+3}], v57 offset:{FIN + arr*17408 + hf*16}")
            a.e("s_waitcnt lgkmcnt(0)")
        def s_collect():
            fin_read(16)
            for i in range(8): a.e(f"v_add_f32 v{100+i}, v{16+i}, v{24+i}")
        a.e(f"s_cmp_lt_u32 {sW}, 4"); a.e("s_cbranch_scc1 L_pcons")
        q0 = list(a.vq)
        self.p2_voff(4)
        a.e(f"s_and_b32 s66, {sW}, 3")
        a.e("v_and_b32 v3, 7, v1"); a.e(f"s_lshr_b32 s54, {sTB}, 1"); a.e("s_lshl_b32 s54, s54, 3"); a.e("v_add_u32 v3, s54, v3"); a.e("v_lshlrev_b32 v3, 7, v3"); a.e(f"v_add_u32 v59, {FL_O}, v3")
        a.e("v_min_u32 v2, 14, v1"); a.e(f"s_mul_i32 s54, {sDB}, 15"); a.e("v_add_u32 v2, s54, v2"); a.e("v_lshlrev_b32 v2, 7, v2"); a.e(f"v_add_u32 v58, {FL_U}, v2")
        a.e("s_lshr_b32 s55, s66, 1"); a.e("s_and_b32 s65, s66, 1"); a.e("s_lshl_b32 s65, s65, 11")
        a.e(f"s_lshl_b32 s60, {sDB}, 1"); a.e("s_add_u32 s60, s60, s55"); a.e(f"s_mul_i32 s60, s60, {UPITCH*1024}"); a.e("s_add_u32 s60, s60, s65"); a.e(f"s_add_u32 s60, s60, {UF_OFF}")
        a.e(f"s_lshl_b32 s61, {sTB}, 1"); a.e("s_add_u32 s61, s61, s55"); a.e("s_lshl_b32 s61, s61, 15"); a.e("s_add_u32 s61, s61, s65"); a.e(f"s_add_u32 s61, s61, {OF_OFF}")
        for n in range(22):
            self.p2_rot("s65", n); a.e("s_lshl_b32 s65, s65, 12"); a.e(f"s_add_u32 s{70+n}, s65, s60")
        def w2(n):
            for i in range(2): self.p2_w2(n, W2SLOT[n], i)
        def wo(k):
            a.e(f"s_add_u32 s65, s97, {k}"); a.e("s_and_b32 s65, s65, 7"); a.e("s_lshl_b32 s64, s65, 16")
            for i in range(2):
                a.e(f"s_add_u32 m0, s69, {WOSLOT[k]*8192 + i*1024}")
                a.e(f"buffer_load_dwordx4 v{62+i}, {WO}, s64 offen lds", tag=f"wo{k}")
        def od(k):
            a.e(f"s_add_u32 s65, s97, {k}"); a.e("s_and_b32 s65, s65, 7"); a.e("s_lshl_b32 s65, s65, 12"); a.e("s_add_u32 s65, s65, s61")
            a.e(f"s_add_u32 m0, s69, {OSLOT[k]*8192}")
            a.e(f"buffer_load_dwordx4 v6, {WS}, s65 offen sc1 lds", tag=f"o{k}"); a.e(f"buffer_load_dwordx4 v6, {WS}, s65 offen offset:1024 sc1 lds", tag=f"o{k}")
        def ud(n):
            a.e(f"s_add_u32 m0, s69, {USLOT(n)*8192}")
            a.e(f"buffer_load_dwordx4 v6, {WS}, s{70+n} offen sc1 lds", tag=f"u{n}"); a.e(f"buffer_load_dwordx4 v6, {WS}, s{70+n} offen offset:1024 sc1 lds", tag=f"u{n}")
        a.e("s_waitcnt vmcnt(0)"); a.e("s_barrier")
        for n in range(12, 20): w2(n)
        a.e("s_barrier")
        self.poll_issue("v59", 8, "pf")
        for k in range(8): wo(k)
        a.wait(v=("w2_17",)); a.e("s_barrier")
        self.poll_check("v59", 8, "pf")
        self.stamp(11)
        for k in range(4): od(k)
        a.e("s_barrier")
        for k in range(4, 8): od(k)
        w2(20); w2(21)
        a.wait(v=("o3",)); a.e("s_barrier")
        a.wait(v=("o7",)); a.e("s_barrier")
        a.e("s_barrier")
        a.e("s_barrier")
        s_collect()
        self.stamp(15)
        self.poll("v58", nl=15)
        a.e("s_waitcnt vmcnt(0)")
        a.e("s_barrier")
        self.stamp(12)
        UB = [2, 4, 6, 9, 12, 15, 18, 20, 22]
        nxt = 0
        for k, ub in enumerate(UB):
            lim = min(22, ub + 4)
            if k >= 2: lim = min(lim, UB[k - 2] + 16 - 1)
            else: lim = min(lim, 16)
            while nxt < lim: ud(nxt); nxt += 1
            a.wait(v=(f"u{ub-1}",)); a.e("s_barrier")
        assert nxt == 22
        a.e("s_branch L_fin")
        a.label("L_pcons"); a.vq = list(q0); a.lq = []
        a.e(f"s_lshr_b32 {sKH}, {sW}, 1"); a.e(f"s_and_b32 {sPH}, {sW}, 1")
        ACC, WR, FB = 64, 112, 16
        a.e("v_bfe_u32 v2, v1, 2, 2"); a.e("v_lshrrev_b32 v3, 5, v1"); a.e("v_lshl_add_u32 v4, v3, 2, v2"); a.e("v_lshlrev_b32 v8, 7, v4")
        a.e("v_lshrrev_b32 v2, 1, v2"); a.e("v_lshl_add_u32 v8, v2, 6, v8")
        a.e("v_bfe_u32 v2, v1, 4, 1"); a.e("v_lshl_add_u32 v8, v2, 5, v8"); a.e("v_and_b32 v2, 3, v1"); a.e("v_lshl_add_u32 v8, v2, 3, v8")
        a.e(f"s_lshl_b32 s54, {sKH}, 12"); a.e("v_add_u32 v8, s54, v8"); a.e("v_xor_b32 v9, 64, v8")
        a.e("v_add_u32 v10, 0x10000, v8"); a.e("v_add_u32 v11, 0x10000, v9")
        a.e(f"s_lshl_b32 s54, {sPH}, 6"); a.e("v_xor_b32 v12, s54, v8"); a.e("v_add_u32 v13, 0x10000, v12"); a.e("v_add_u32 v14, 0x20000, v12")
        a.e(f"s_lshl_b32 s54, {sKH}, 11"); a.e("v_add_u32 v58, s54, v6"); a.e("v_add_u32 v59, 0x10000, v58")
        a.e(f"s_lshl_b32 s54, {sPH}, 12"); a.e("v_add_u32 v60, s54, v58"); a.e("v_add_u32 v61, 0x10000, v60")
        a.e("v_and_b32 v2, 31, v1"); a.e("v_mul_u32_u24 v2, 272, v2"); a.e("v_lshl_add_u32 v54, v3, 4, v2")
        a.e(f"s_mul_i32 s54, {sKH}, 17408"); a.e(f"s_mul_i32 s55, {sPH}, {32*272}"); a.e("s_add_u32 s54, s54, s55"); a.e("v_add_u32 v54, s54, v54")
        def w2read(n, ks, r, tag=None):
            sl = W2SLOT[n]; off = (sl % 8) * 8192 + ks * 2048; va = 12 + sl // 8
            a.e(f"ds_read_b64_tr_b16 v[{r}:{r+1}], v{va} offset:{off}", tag=tag); a.e(f"ds_read_b64_tr_b16 v[{r+2}:{r+3}], v{va} offset:{off+1024}", tag=tag)
        def stage_out():
            for dh in range(2):
                for q in range(4): a.e(f"ds_write_b128 v54, v[{ACC+16*dh+4*q}:{ACC+16*dh+4*q+3}] offset:{FIN + dh*128 + q*32}")
            a.e("s_waitcnt lgkmcnt(0)")
        a.e("s_waitcnt vmcnt(0)"); a.e("s_barrier")
        self.stamp(11)
        for n in range(12):
            for ks in range(2): w2read(n, ks, WR + 8 * n + 4 * ks)
        a.e("s_waitcnt lgkmcnt(0)"); a.e("s_barrier")
        a.e("s_barrier")
        for n in range(12, 18):
            for ks in range(2): w2read(n, ks, WR + 8 * n + 4 * ks)
        a.e("s_waitcnt lgkmcnt(0)"); a.e("s_barrier")
        def word(j):
            k, ks = j >> 1, j & 1
            b = FB + 12 * (j % 3); sl = WOSLOT[k]; so = OSLOT[k]
            a.e(f"ds_read_b128 v[{b}:{b+3}], v{60+so//8} offset:{(so % 8)*8192 + ks*1024}", tag=f"f{j}")
            for dh in range(2):
                off = (sl % 8) * 8192 + ks * 2048; va = 8 + 2 * (sl // 8) + dh; r = b + 4 + 4 * dh
                a.e(f"ds_read_b64_tr_b16 v[{r}:{r+1}], v{va} offset:{off}", tag=f"f{j}"); a.e(f"ds_read_b64_tr_b16 v[{r+2}:{r+3}], v{va} offset:{off+1024}", tag=f"f{j}")
        for lo, hi in ((0, 8), (8, 16)):
            a.e("s_barrier")
            word(lo); word(lo + 1)
            for j in range(lo, hi):
                a.wait(l=(f"f{j}",))
                b = FB + 12 * (j % 3)
                for dh in range(2):
                    c = ACC + 16 * dh
                    a.e(f"v_mfma_f32_32x32x16_bf16 v[{c}:{c+15}], v[{b+4+4*dh}:{b+7+4*dh}], v[{b}:{b+3}], " + ("0" if j == 0 else f"v[{c}:{c+15}]"))
                    if dh == 0 and j + 2 < hi: word(j + 2)
        a.e("s_barrier")
        stage_out()
        a.e("s_barrier")
        s_collect()
        self.stamp(15)
        a.e("s_barrier")
        self.stamp(12)
        def urd(j):
            n, ks = j >> 1, j & 1
            b = FB + 12 * (j % 3); sl = USLOT(n)
            for dh in range(2):
                a.e(f"ds_read_b128 v[{b+4*dh}:{b+4*dh+3}], v{58+sl//8} offset:{(sl % 8)*8192 + dh*4096 + ks*1024}", tag=f"f{j}")
            if n >= 18: w2read(n, ks, b + 8, tag=f"f{j}")
        nrd = 0; ncomp = 0
        def comp(j):
            a.wait(l=(f"f{j}",))
            b = FB + 12 * (j % 3); n = j >> 1
            w = b + 8 if n >= 18 else WR + 4 * j
            for dh in range(2):
                c = ACC + 16 * dh
                a.e(f"v_mfma_f32_32x32x16_bf16 v[{c}:{c+15}], v[{b+4*dh}:{b+4*dh+3}], v[{w}:{w+3}], " + ("0" if j == 0 else f"v[{c}:{c+15}]"))
        for k, ub in enumerate(UB):
            self.stamp(40 + k, fine=True)
            a.e("s_barrier")
            while nrd < 2 * ub:
                urd(nrd); nrd += 1
                if nrd - ncomp >= 3: comp(ncomp); ncomp += 1
        while ncomp < 44: comp(ncomp); ncomp += 1
        self.stamp(13)
        a.e("v_add_u32 v54, 0x4000, v54")
        stage_out()
        a.label("L_fin")
        a.e("v_lshlrev_b32 v52, 16, v52")
        self.unpack(40, 96, 4)
        a.e("s_barrier")
        a.e("v_add_u32 v57, 0x4000, v57")
        fin_read(16)
        for i in range(8): a.e(f"v_add_f32 v{16+i}, v{16+i}, v{24+i}")
        for i in range(8): a.e(f"v_add_f32 v{16+i}, v{16+i}, v52")
        for i in range(8): a.e(f"v_mul_f32 v{24+i}, v53, v{16+i}")
        for i in range(8): a.e(f"v_exp_f32 v{24+i}, v{24+i}")
        for i in range(8): a.e(f"v_mul_f32 v{16+i}, v{16+i}, v{100+i}")
        for i in range(8): a.e(f"v_add_f32 v{24+i}, 1.0, v{24+i}")
        for i in range(8): a.e(f"v_rcp_f32 v{24+i}, v{24+i}")
        for i in range(8): a.e(f"v_fma_f32 v{16+i}, v{16+i}, v{24+i}, v{40+i}")
        self.pack(8, 16, 4)
        a.e(f"buffer_store_dwordx4 v[8:11], v56, {OUT}, s67 offen")
        if self.stamps:
            a.e("s_waitcnt vmcnt(0)")
            self.stamp(14)
            a.e("v_lshlrev_b32 v2, 2, v0"); a.e("s_lshl_b32 s54, s2, 11"); a.e(f"s_add_u32 s54, s54, {STAMP_OFF}")
            a.e(f"buffer_store_dword v7, v2, {WS}, s54 offen")
    def build(self):
        a = self.a
        a.raw(HDR.rstrip())
        a.raw(f"; @launch grid=(256,1,1) block=(512,1,1) lds={LDS_BYTES}")
        a.raw('.amdgcn_target "amdgcn-amd-amdhsa--gfx950"'); a.raw(".text"); a.raw(f".globl {NAME}_kernel"); a.raw(".p2align 8")
        a.raw(f".type {NAME}_kernel,@function"); a.label(f"{NAME}_kernel")
        self.prologue()
        q0 = list(a.vq)
        a.e(f"s_cmp_lt_u32 {sJ}, 16"); a.e("s_cbranch_scc1 L_roleA")
        self.role_b()
        a.label("L_phase2")
        a.e("s_nop 1")
        self.phase2()
        a.e("s_endpgm")
        a.label("L_roleS"); a.vq = list(q0); a.lq = []
        self.role_s()
        a.e("s_branch L_phase2")
        a.label("L_roleA"); a.vq = list(q0); a.lq = []
        self.role_a()
        a.e("s_branch L_phase2")
        a.label("L_end")
        a.e("s_endpgm")
        a.raw('.section .rodata,"a"'); a.raw(".p2align 6"); a.raw(f".amdhsa_kernel {NAME}_kernel")
        for l in ("next_free_vgpr 256", "next_free_sgpr 102", "accum_offset 256", "group_segment_fixed_size 0", "kernarg_size 96",
                  "user_sgpr_count 2", "user_sgpr_kernarg_segment_ptr 1", "system_sgpr_workgroup_id_x 1", "float_denorm_mode_32 3"):
            a.raw("  .amdhsa_" + l)
        a.raw(".end_amdhsa_kernel")
        return a.render()

if __name__ == "__main__":
    stamps = "--stamps" in sys.argv
    out = [x for x in sys.argv[1:] if not x.startswith("--")]
    g = G(stamps)
    txt = g.build()
    open(out[0] if out else "k.s", "w").write(txt)
    print("lines", txt.count("\n"), "nops", g.a.nops)
```

```python
import sys, math, os, struct
from asmlib import Asm

NAME = "recurrent_scan__linear_kernel_hedgehog__mixer_token_mlp__prompt"
HDR = open("cdna_kernels/" + NAME + ".s.ref").read().split("; Override launch geometry")[0]

HF_OFF, OF_OFF, UF_OFF, KV_OFF, FL_OFF, ST_OFF, STAMP_OFF = 0x200000, 0x400000, 0x600000, 0x880000, 0x820000, 0x840000, 0x900000
KVZ_OFF = KV_OFF
FL_LN, FL_KV, FL_O, FL_U = FL_OFF, FL_OFF + 0x8000, FL_OFF + 0xC000, FL_OFF + 0x10000
WS_SIZE = 0x1000000
UPITCH = 90
LDS_BYTES = 163840
X, WQKV, WPHI, WO, W1, B1, W2, B2, OUT, DBG, WS = [f"s[{i}:{i+3}]" for i in range(4, 48, 4)]
SRD_SIZES = [2097152, 1572864, 16384, 524288, 5636096, 2752, 5636096, 4096, 2097152, 256, WS_SIZE]
SRD_PTR = [64, 66, 68, 70, 74, 76, 78, 80, 82, 84, 86]
sW, sG, sJ = "s48", "s49", "s50"
sN0, sN1, sNON = "s52", "s53", "s[52:53]"
LOG2E = 1.4426950408889634
SPIN_MAX = 20000
SLEEP = int(os.environ.get("SLEEP", "1"))
FINE = int(os.environ.get("FINE", "0"))
KVJ = int(os.environ.get("KVJ", "14"))
TOUCH = int(os.environ.get("TOUCH", "1"))
NT = int(os.environ.get("NT", "0"))
BMAP = int(os.environ.get("BMAP", "24"))
WAITW = int(os.environ.get("WAITW", "0"))
NWS_ = int(os.environ.get("NWS", "9"))
NPS_ = int(os.environ.get("NPS", "6"))
PRE = int(os.environ.get("PRE", "7"))
PROBE = [int(x) for x in os.environ.get("PROBE", "").split(",") if x]
CODEPF = int(os.environ.get("CODEPF", "1"))
WARM = int(os.environ.get("WARM", "1"))

def f2h(x): return "0x%08x" % struct.unpack("<I", struct.pack("<f", x))[0]

class G:
    def __init__(self, stamps=False):
        self.a = Asm(); self.stamps = stamps
    def stamp(self, idx, fine=False):
        if PROBE and idx == PROBE[1]:
            self.a.e("s_memrealtime s[98:99]"); self.a.e("s_waitcnt lgkmcnt(0)")
        if not self.stamps or (fine and not FINE): return
        a = self.a
        a.e("s_memrealtime s[98:99]"); a.e("s_waitcnt lgkmcnt(0)"); a.e(f"v_writelane_b32 v7, s98, {idx}")
    def capture(self, fn):
        a = self.a; out = []
        save = a.e
        a.e = lambda s, tag=None: out.append((s, tag))
        fn()
        a.e = save
        return out
    def unpack(self, dst0, src0, n):
        for i in range(n):
            self.a.e(f"v_lshlrev_b32 v{dst0+2*i}, 16, v{src0+i}")
            self.a.e(f"v_and_b32 v{dst0+2*i+1}, 0xffff0000, v{src0+i}")
    def pack(self, dst0, src0, n):
        for i in range(n):
            self.a.e(f"v_cvt_pk_bf16_f32 v{dst0+i}, v{src0+2*i}, v{src0+2*i+1}")
    def wave0_begin(self):
        a = self.a; lab = a.newlabel("Lw0")
        a.e(f"s_cmp_lg_u32 {sW}, 0"); a.e(f"s_cbranch_scc1 {lab}"); self._tr = a.track; a.track = False
        return lab
    def wave0_end(self, lab):
        self.a.label(lab); self.a.track = self._tr
    def flag_store(self, soff_reg, t=2):
        a = self.a
        lab = self.wave0_begin()
        a.e(f"v_mov_b32 v{t}, {sN0}"); a.e(f"v_mov_b32 v{t+1}, {sN1}"); a.e(f"v_mov_b32 v{t+2}, 0")
        a.e("s_mov_b64 exec, 1")
        a.e(f"buffer_store_dwordx2 v[{t}:{t+1}], v{t+2}, {WS}, {soff_reg} offen sc1")
        a.e("s_mov_b64 exec, -1")
        self.wave0_end(lab)
    def poll(self, vaddr, tmp=8, pre=False, nl=64):
        a = self.a
        tr = a.track; a.track = False
        a.e("s_mov_b32 s96, 0")
        for stage in ((0, 1) if pre else (1,)):
            lp = a.newlabel("Lpoll"); dn = a.newlabel("Lpd")
            a.e("s_mov_b64 exec, 1" if stage == 0 else ("s_mov_b64 exec, -1" if nl == 64 else f"s_mov_b64 exec, {hex((1 << nl) - 1)}"))
            a.label(lp)
            a.e(f"buffer_load_dwordx2 v[{tmp}:{tmp+1}], {vaddr}, {WS}, 0 offen sc1")
            a.e("s_waitcnt vmcnt(0)")
            a.e(f"v_cmp_ne_u64 vcc, {sNON}, v[{tmp}:{tmp+1}]")
            a.e("s_add_u32 s96, s96, 1")
            a.e("s_cmp_eq_u64 vcc, 0"); a.e(f"s_cbranch_scc1 {dn}")
            a.e("s_mov_b64 exec, vcc")
            a.e(f"s_cmp_gt_u32 s96, {SPIN_MAX}"); a.e(f"s_cbranch_scc1 {dn}")
            a.e(f"s_sleep {SLEEP if stage else 2}"); a.e(f"s_branch {lp}")
            a.label(dn)
        a.e("s_mov_b64 exec, -1")
        a.track = tr
    def poll_issue(self, vaddr, tmp, tag):
        self.a.e(f"buffer_load_dwordx2 v[{tmp}:{tmp+1}], {vaddr}, {WS}, 0 offen sc1", tag=tag)
    def poll_check(self, vaddr, tmp, tag):
        a = self.a; ok = a.newlabel("Lok")
        a.wait(v=(tag,))
        a.e(f"v_cmp_ne_u64 vcc, {sNON}, v[{tmp}:{tmp+1}]")
        a.e("s_cmp_eq_u64 vcc, 0"); a.e(f"s_cbranch_scc1 {ok}")
        self.poll(vaddr, tmp=tmp)
        a.label(ok)
    def nonce_issue(self, tmp, z):
        self.a.e(f"v_mov_b32 v{z}, 0")
        self.a.e(f"buffer_load_dwordx2 v[{tmp}:{tmp+1}], v{z}, {DBG}, 0 offen sc1", tag="nonce")
    def nonce_get(self, tmp, z):
        a = self.a
        a.wait(v=("nonce",))
        lp = a.newlabel("Lnp"); dn = a.newlabel("Lnd")
        tr = a.track; a.track = False
        a.e("s_mov_b32 s96, 0")
        a.label(lp)
        a.e(f"v_readfirstlane_b32 {sN0}, v{tmp}"); a.e(f"v_readfirstlane_b32 {sN1}, v{tmp+1}")
        a.e(f"s_cmp_lg_u32 {sN1}, 0"); a.e(f"s_cbranch_scc1 {dn}")
        a.e("s_add_u32 s96, s96, 1"); a.e(f"s_cmp_gt_u32 s96, {SPIN_MAX}"); a.e(f"s_cbranch_scc1 {dn}")
        a.e("s_sleep 1")
        a.e(f"buffer_load_dwordx2 v[{tmp}:{tmp+1}], v{z}, {DBG}, 0 offen sc1"); a.e("s_waitcnt vmcnt(0)")
        a.e(f"s_branch {lp}")
        a.label(dn)
        a.track = tr
    def prologue(self):
        a = self.a
        a.e("s_cmp_ge_u32 s2, 256"); a.e("s_cbranch_scc1 L_end")
        a.e("s_load_dwordx16 s[64:79], s[0:1], 0"); a.e("s_load_dwordx8 s[80:87], s[0:1], 64")
        a.e("s_memrealtime s[92:93]")
        a.e("v_and_b32 v1, 63, v0"); a.e("v_lshrrev_b32 v2, 6, v0"); a.e(f"v_readfirstlane_b32 {sW}, v2")
        a.e("v_lshlrev_b32 v6, 4, v1")
        if CODEPF:
            a.e("s_getpc_b64 s[88:89]")
            a.label("L_pc")
            a.e("s_bfe_u32 s54, s2, 0x30003"); a.e("s_lshl_b32 s54, s54, 13")
            a.e("v_lshlrev_b32 v2, 10, v2"); a.e("v_lshl_add_u32 v2, v1, 7, v2"); a.e("v_add_u32 v2, s54, v2")
            a.e("v_min_u32 v2, L_end-L_pc, v2")
            a.e("v_mov_b32 v3, s89"); a.e("v_add_co_u32 v2, vcc, s88, v2"); a.e("v_addc_co_u32 v3, vcc, 0, v3, vcc")
            a.e("s_mov_b64 exec, 0xff")
            a.e("global_load_dword v255, v[2:3], off", tag="cpf")
            a.e("s_mov_b64 exec, -1")
        a.e(f"s_and_b32 {sG}, s2, 7"); a.e(f"s_lshr_b32 {sJ}, s2, 3")
        for i, sz in enumerate(SRD_SIZES):
            a.e(f"s_mov_b32 s{4+4*i+2}, {sz}"); a.e(f"s_mov_b32 s{4+4*i+3}, 0x20000")
        a.e("s_waitcnt lgkmcnt(0)")
        if self.stamps:
            a.e("v_mov_b32 v7, 0"); a.e("v_writelane_b32 v7, s92, 0")
        a.e("s_mov_b64 s[40:41], s[84:85]")
        lab = a.newlabel("Lnon")
        a.e(f"s_or_b32 s54, s2, {sW}"); a.e("s_cmp_lg_u32 s54, 0"); a.e(f"s_cbranch_scc1 {lab}")
        a.track = False
        a.e("s_or_b32 s93, s93, 0x40000000")
        a.e("v_mov_b32 v2, s92"); a.e("v_mov_b32 v3, s93"); a.e("v_mov_b32 v4, 0")
        a.e("s_mov_b64 exec, 1")
        a.e(f"buffer_store_dwordx2 v[2:3], v4, {DBG}, 0 offen sc1")
        a.e("s_mov_b64 exec, -1")
        a.track = True
        a.label(lab)
        for i, p in enumerate(SRD_PTR):
            if i != 9: a.e(f"s_mov_b64 s[{4+4*i}:{5+4*i}], s[{p}:{p+1}]")
    def ln_block(self, pre):
        a = self.a
        LH = 131072
        R = (128, 132)
        a.e(f"s_mul_i32 s54, {sW}, 1088"); a.e(f"s_add_u32 s54, s54, {LH}"); a.e("v_add_u32 v136, s54, v6")
        a.e("v_bfe_u32 v137, v1, 2, 2"); a.e("v_lshrrev_b32 v138, 5, v1"); a.e("v_lshl_add_u32 v137, v138, 3, v137"); a.e("v_mul_u32_u24 v137, 1088, v137")
        a.e("v_bfe_u32 v139, v1, 4, 1"); a.e("v_lshl_add_u32 v137, v139, 5, v137"); a.e("v_and_b32 v138, 3, v1"); a.e("v_lshl_add_u32 v137, v138, 3, v137")
        a.e(f"s_lshl_b32 s54, {sW}, 7"); a.e(f"s_add_u32 s54, s54, {LH}"); a.e("v_add_u32 v137, s54, v137")
        a.e("v_mov_b32 v139, v6")
        a.e("s_lshl_b32 s88, s62, 10"); a.e(f"s_lshl_b32 s54, {sW}, 18"); a.e("s_add_u32 s88, s88, s54"); a.e(f"s_add_u32 s88, s88, {HF_OFF}")
        a.e("s_add_u32 s87, s88, 0x20000")
        a.e("s_lshl_b32 s86, s62, 7"); a.e(f"s_lshl_b32 s54, {sW}, 3"); a.e("s_add_u32 s86, s86, s54"); a.e(f"s_add_u32 s86, s86, {ST_OFF}")
        a.e(f"v_mov_b32 v140, {f2h(1e-5)}")
        pre()
        a.wait(v=("xrow",))
        self.stamp(1)
        self.nonce_issue(22, 4)
        T = (144, 152); S1 = (160, 162); S2 = (161, 163)
        for r in range(2): self.unpack(T[r], R[r], 4)
        for r in range(2): a.e(f"v_readfirstlane_b32 s{90+r}, v{T[r]}")
        for r in range(2): a.e(f"v_mov_b32 v{141+r}, s{90+r}")
        for i in range(8):
            for r in range(2): a.e(f"v_sub_f32 v{T[r]+i}, v{T[r]+i}, v{141+r}")
        for r in range(2):
            a.e(f"v_add_f32 v{S1[r]}, v{T[r]}, v{T[r]+1}"); a.e(f"v_mul_f32 v{S2[r]}, v{T[r]}, v{T[r]}")
        for i in range(1, 8):
            for r in range(2):
                if i >= 2: a.e(f"v_add_f32 v{S1[r]}, v{S1[r]}, v{T[r]+i}")
                a.e(f"v_fmac_f32 v{S2[r]}, v{T[r]+i}, v{T[r]+i}")
        a.e("v_permlane16_swap_b32 v160, v161"); a.e("v_permlane16_swap_b32 v162, v163")
        a.e("v_add_f32 v160, v160, v161"); a.e("v_add_f32 v162, v162, v163")
        a.e("v_permlane32_swap_b32 v160, v162"); a.e("v_add_f32 v160, v160, v162")
        for ctl in ("quad_perm:[1,0,3,2]", "quad_perm:[2,3,0,1]", "row_half_mirror", "row_mirror"):
            a.e(f"v_add_f32_dpp v160, v160, v160 {ctl} row_mask:0xf bank_mask:0xf")
        a.e("v_mul_f32 v160, 0x3b000000, v160")
        for q in range(4): a.e(f"v_readlane_b32 s{92+q}, v160, {16*q}")
        for r in range(2):
            b = 160 + 5 * r
            a.e(f"v_mov_b32 v{b}, s{92+2*r}")
            a.e(f"v_fma_f32 v{b+1}, -v{b}, v{b}, s{93+2*r}"); a.e(f"v_max_f32 v{b+1}, 0, v{b+1}")
            a.e(f"v_add_f32 v{b+2}, v140, v{b+1}"); a.e(f"v_fmac_f32 v{b+1}, v{b+2}, v140")
        for r in range(2):
            b = 160 + 5 * r
            a.e(f"v_rsq_f32 v{b+1}, v{b+1}")
        for r in range(2):
            b = 160 + 5 * r
            a.e(f"v_rsq_f32 v{129+2*r}, v{b+2}"); a.e(f"v_add_f32 v{128+2*r}, v{141+r}, v{b}"); a.e(f"v_mul_f32 v{b}, v{b}, v{b+1}")
        for r in range(2):
            b = 160 + 5 * r
            for i in range(8): a.e(f"v_fma_f32 v{T[r]+i}, v{T[r]+i}, v{b+1}, -v{b}")
            self.pack(T[r], T[r], 4)
            a.e(f"ds_write_b128 v136, v[{T[r]}:{T[r]+3}] offset:{r*8*1088}")
        a.e("s_mov_b64 exec, 1")
        for r in range(2): a.e(f"buffer_store_dwordx2 v[{128+2*r}:{129+2*r}], v4, {WS}, s86 offen offset:{64*r} sc1", tag="lnst")
        a.e("s_mov_b64 exec, -1")
        a.e("s_waitcnt lgkmcnt(0)"); a.e("s_barrier")
        for n in range(2):
            a.e(f"ds_read_b64_tr_b16 v[{144+4*n}:{145+4*n}], v137 offset:{64*n}"); a.e(f"ds_read_b64_tr_b16 v[{146+4*n}:{147+4*n}], v137 offset:{64*n+4*1088}")
        a.e("s_waitcnt lgkmcnt(2)")
        a.e(f"buffer_store_dwordx4 v[144:147], v139, {WS}, s88 offen sc1", tag="lnst")
        a.e("s_waitcnt lgkmcnt(0)")
        a.e(f"buffer_store_dwordx4 v[148:151], v139, {WS}, s87 offen sc1", tag="lnst")
        self.stamp(2)
    def feat(self, P, Gm, t, vsc, norm=True):
        a = self.a
        M0, M1, S0, S1 = t, t + 1, t + 2, t + 3
        a.e(f"v_max3_f32 v{M0}, v{P}, v{P+1}, v{P+2}"); a.e(f"v_min3_f32 v{M1}, v{P}, v{P+1}, v{P+2}")
        a.e(f"v_max3_f32 v{M0}, v{M0}, v{P+3}, v{P+4}"); a.e(f"v_min3_f32 v{M1}, v{M1}, v{P+3}, v{P+4}")
        a.e(f"v_max3_f32 v{M0}, v{M0}, v{P+5}, v{P+6}"); a.e(f"v_min3_f32 v{M1}, v{M1}, v{P+5}, v{P+6}")
        a.e(f"v_max_f32 v{M0}, v{M0}, v{P+7}"); a.e(f"v_max_f32 v{M1}, -v{M1}, -v{P+7}")
        a.e(f"v_permlane32_swap_b32 v{M0}, v{M1}"); a.e(f"v_max_f32 v{M0}, v{M0}, v{M1}")
        a.e(f"v_mul_f32 v{M0}, v{vsc}, v{M0}")
        a.e(f"v_mov_b32 v{M1}, v{M0}"); a.e(f"v_permlane32_swap_b32 v{M0}, v{M1}")
        for i in range(8):
            a.e(f"v_fma_f32 v{Gm+i}, v{P+i}, v{vsc}, -v{M0}"); a.e(f"v_fma_f32 v{P+i}, -v{P+i}, v{vsc}, -v{M1}")
        for i in range(8):
            a.e(f"v_exp_f32 v{Gm+i}, v{Gm+i}"); a.e(f"v_exp_f32 v{P+i}, v{P+i}")
        a.e(f"v_add_f32 v{S0}, v{Gm}, v{Gm+1}"); a.e(f"v_add_f32 v{S1}, v{P}, v{P+1}")
        for i in range(2, 8):
            a.e(f"v_add_f32 v{S0}, v{S0}, v{Gm+i}"); a.e(f"v_add_f32 v{S1}, v{S1}, v{P+i}")
        a.e(f"v_permlane32_swap_b32 v{S0}, v{S1}"); a.e(f"v_add_f32 v{S0}, v{S0}, v{S1}")
        a.e(f"v_rcp_f32 v{S0}, v{S0}")
        a.e(f"v_mov_b32 v{S1}, v{S0}"); a.e(f"v_permlane32_swap_b32 v{S0}, v{S1}")
        for i in range(8):
            a.e(f"v_mul_f32 v{Gm+i}, v{Gm+i}, v{S0}"); a.e(f"v_mul_f32 v{P+i}, v{P+i}, v{S1}")
    def lds_sync(self, vaddr, target, t):
        a = self.a
        lp = a.newlabel("Lls"); dn = a.newlabel("Lld")
        a.e(f"v_mov_b32 v{t}, 1"); a.e("s_mov_b64 exec, 1"); a.e(f"ds_add_u32 {vaddr}, v{t}"); a.e("s_mov_b64 exec, -1")
        a.e("s_mov_b32 s96, 0")
        a.label(lp)
        a.e(f"ds_read_b32 v{t}, {vaddr}"); a.e("s_waitcnt lgkmcnt(0)"); a.e(f"v_readfirstlane_b32 s95, v{t}")
        a.e(f"s_cmp_ge_u32 s95, {target}"); a.e(f"s_cbranch_scc1 {dn}")
        a.e("s_add_u32 s96, s96, 1"); a.e("s_cmp_lt_u32 s96, 1000000"); a.e(f"s_cbranch_scc1 {lp}")
        a.label(dn)
    def p2_ids(self):
        a = self.a
        a.e(f"s_and_b32 s100, {sG}, 1"); a.e("s_lshl_b32 s100, s100, 2"); a.e(f"s_lshr_b32 s54, {sJ}, 3"); a.e("s_add_u32 s100, s100, s54")
        a.e(f"s_lshr_b32 s101, {sG}, 1"); a.e("s_lshl_b32 s101, s101, 3"); a.e(f"s_and_b32 s55, {sJ}, 7"); a.e("s_add_u32 s101, s101, s55")
        a.e("s_lshl_b32 s97, s54, 1"); a.e("s_add_u32 s97, s97, s55")
        a.e("s_lshl_b32 s54, s54, 1"); a.e(f"s_and_b32 s3, {sG}, 1"); a.e("s_add_u32 s54, s54, s3"); a.e("s_add_u32 s54, s54, s55"); a.e("s_and_b32 s54, s54, 7")
        a.e("s_mul_i32 s3, s54, 11"); a.e("s_lshr_b32 s3, s3, 2")
        a.e("s_cmp_ge_u32 s3, 22"); a.e("s_cselect_b32 s54, 22, 0"); a.e("s_sub_u32 s3, s3, s54")
    def p2_voff(self, nw):
        a = self.a
        a.e("v_bfe_u32 v2, v1, 4, 1"); a.e("v_lshlrev_b32 v2, 2, v2"); a.e("v_and_b32 v3, 7, v1"); a.e("v_xor_b32 v2, v2, v3"); a.e("v_lshlrev_b32 v2, 4, v2")
        a.e("v_lshrrev_b32 v3, 3, v1")
        if nw == 8: a.e(f"s_mov_b32 s68, {sW}")
        else: a.e(f"s_and_b32 s68, {sW}, 3"); a.e("s_lshl_b32 s68, s68, 1")
        a.e("s_lshl_b32 s69, s68, 10")
        a.e("v_lshl_add_u32 v60, v3, 12, v2"); a.e("s_lshl_b32 s54, s68, 15"); a.e("s_lshl_b32 s55, s101, 7"); a.e("s_add_u32 s54, s54, s55")
        a.e("v_add_u32 v60, s54, v60")
        if nw == 4:
            a.e("v_add_u32 v61, 0x8000, v60")
            a.e("v_lshl_add_u32 v62, v3, 10, v2"); a.e("s_lshl_b32 s54, s68, 13"); a.e("s_lshl_b32 s55, s100, 7"); a.e("s_add_u32 s54, s54, s55")
            a.e("v_add_u32 v62, s54, v62"); a.e("v_add_u32 v63, 0x2000, v62")
    def p2_rot(self, dst, n):
        a = self.a
        a.e(f"s_add_u32 {dst}, s3, {n}"); a.e(f"s_cmp_ge_u32 {dst}, 22"); a.e("s_cselect_b32 s54, 22, 0"); a.e(f"s_sub_u32 {dst}, {dst}, s54")
    def p2_w2(self, n, slot, i, tag=None):
        a = self.a
        if i == 0: self.p2_rot("s68", n); a.e("s_lshl_b32 s68, s68, 18")
        a.e(f"s_add_u32 m0, s69, {slot*8192 + i*1024}")
        a.e(f"buffer_load_dwordx4 v{60+i}, {W2}, s68 offen lds", tag=tag or f"w2_{n}")
    def p2_early(self, n, i): self.p2_w2(n, 4 + n, i)
    def role_a(self):
        a = self.a
        sTB, sHG, sROT, sTG, sHP = "s56", "s57", "s51", "s58", "s59"
        XR, AK, AV, AQ, WF = 128, 64, 80, 96, 112
        CS = 149504
        a.e(f"s_lshr_b32 {sTB}, {sG}, 1"); a.e(f"s_lshl_b32 {sTB}, {sTB}, 2"); a.e(f"s_and_b32 s54, {sJ}, 3"); a.e(f"s_add_u32 {sTB}, {sTB}, s54")
        a.e(f"s_and_b32 {sHG}, {sG}, 1"); a.e(f"s_lshl_b32 {sHG}, {sHG}, 2"); a.e(f"s_lshr_b32 s55, {sJ}, 2"); a.e(f"s_add_u32 {sHG}, {sHG}, s55")
        a.e(f"s_add_u32 {sROT}, s55, s54"); a.e(f"s_lshl_b32 {sROT}, {sROT}, 1"); a.e(f"s_and_b32 s54, {sG}, 1"); a.e(f"s_add_u32 {sROT}, {sROT}, s54")
        a.e(f"s_lshl_b32 s62, {sTB}, 3"); a.e(f"s_add_u32 s62, s62, {sHG}")
        a.e("s_lshl_b32 s54, s62, 4"); a.e(f"s_add_u32 s54, s54, {sW}"); a.e("s_lshl_b32 s54, s54, 10"); a.e("s_add_u32 s55, s54, 8192")
        a.e(f"buffer_load_dwordx4 v[128:131], v6, {X}, s54 offen", tag="xrow"); a.e(f"buffer_load_dwordx4 v[132:135], v6, {X}, s55 offen", tag="xrow")
        a.e(f"s_and_b32 {sTG}, {sW}, 3"); a.e(f"s_lshr_b32 {sHP}, {sW}, 2")
        a.e("v_lshrrev_b32 v2, 3, v1"); a.e("v_and_b32 v3, 7, v1"); a.e("v_lshrrev_b32 v5, 4, v1"); a.e("v_xor_b32 v5, v5, v3")
        a.e("v_lshlrev_b32 v8, 10, v2"); a.e("v_lshl_add_u32 v8, v5, 4, v8")
        a.e(f"s_lshl_b32 s54, {sTB}, 17"); a.e(f"s_lshl_b32 s55, {sW}, 14"); a.e("s_add_u32 s54, s54, s55")
        a.e("v_add_u32 v8, s54, v8"); a.e("v_xor_b32 v9, 64, v8"); a.e("v_add_u32 v9, 0x2000, v9")
        a.e("v_mul_u32_u24 v5, 3072, v2"); a.e("v_bfe_u32 v2, v1, 4, 1"); a.e("v_lshlrev_b32 v2, 2, v2"); a.e("v_xor_b32 v2, v2, v3")
        a.e("v_lshl_add_u32 v5, v2, 4, v5"); a.e(f"s_lshl_b32 s55, {sHG}, 7"); a.e(f"s_mul_i32 s54, {sW}, 24576"); a.e("s_add_u32 s55, s55, s54"); a.e("v_add_u32 v5, s55, v5")
        a.e("v_add_u32 v10, 1024, v5"); a.e("v_add_u32 v11, 2048, v5")
        a.e(f"s_lshl_b32 s64, {sW}, 11"); a.e(f"s_lshl_b32 s67, {sW}, 10")
        for c in range(8):
            a.e(f"s_add_u32 s65, {sROT}, {c}"); a.e("s_and_b32 s65, s65, 7"); a.e(f"s_lshl_b32 s{70+c}, s65, 7"); a.e(f"s_mul_i32 s{78+c}, s65, {64*3072}")
        def dma(c, i):
            if c < 8:
                if i < 2:
                    a.e(f"s_add_u32 m0, s64, {(c % 4)*16384 + i*1024}")
                    a.e(f"buffer_load_dwordx4 v{8+i}, {X}, s{70+c} offen lds", tag=f"d{c}")
                else:
                    a.e(f"s_add_u32 m0, s67, {65536 + (c % 4)*16384 + (i-2)*8192}")
                    a.e(f"buffer_load_dwordx4 v{8+i}, {WQKV}, s{78+c} offen lds", tag=f"d{c}")
            else:
                sl = c - 8
                qc = (i >> 1) * 4 + 2 * sl + (i & 1)
                a.e(f"s_add_u32 m0, s67, {qaddr(qc)}")
                a.e(f"buffer_load_dwordx4 v5, {WQKV}, s{78+qc} offen lds", tag=f"d{c}")
        def qaddr(qc): return (qc >> 2) * 65536 + (qc & 3) * 8192
        def dma4(c):
            for i in (0, 2, 1, 3): dma(c, i)
        def pre():
            a.e("s_lshl_b32 s61, s62, 7"); a.e(f"s_add_u32 s63, s61, {FL_KV}"); a.e(f"s_add_u32 s61, s61, {FL_O}")
            a.e("v_lshrrev_b32 v3, 5, v1")
            a.e("v_bfe_u32 v2, v1, 4, 1"); a.e("v_lshlrev_b32 v2, 9, v2"); a.e("v_and_b32 v4, 15, v1"); a.e("v_lshl_add_u32 v2, v4, 1, v2")
            a.e("v_lshl_add_u32 v2, v3, 7, v2"); a.e(f"s_lshl_b32 s54, {sHG}, 11"); a.e(f"s_lshl_b32 s55, {sHP}, 10"); a.e("s_add_u32 s54, s54, s55")
            for jj in range(8):
                a.e(f"buffer_load_ushort v{96+jj}, v2, {WPHI}, s54 offen offset:{((jj>>2)*8 + (jj&3))*32}", tag="wphi")
            a.e("s_mov_b32 s89, 0x3f803f80")
            a.e("v_bfe_u32 v2, v1, 2, 2"); a.e("v_lshl_add_u32 v4, v3, 3, v2"); a.e("v_lshlrev_b32 v16, 7, v4")
            a.e("v_lshrrev_b32 v2, 1, v2"); a.e(f"v_xor_b32 v2, {sHP}, v2"); a.e("v_lshl_add_u32 v16, v2, 6, v16")
            a.e("v_bfe_u32 v2, v1, 4, 1"); a.e("v_lshl_add_u32 v16, v2, 5, v16"); a.e("v_and_b32 v2, 3, v1"); a.e("v_lshl_add_u32 v16, v2, 3, v16")
            a.e("v_add_u32 v17, 0x10000, v16")
            a.e(f"s_lshl_b32 s54, {sTG}, 11"); a.e("v_add_u32 v18, s54, v16"); a.e("v_add_u32 v19, s54, v17")
            a.e("v_and_b32 v2, 31, v1"); a.e("v_lshlrev_b32 v2, 7, v2"); a.e(f"s_lshl_b32 s54, {sTG}, 12"); a.e("v_add_u32 v2, s54, v2")
            a.e("v_bfe_u32 v4, v1, 1, 3"); a.e("v_xor_b32 v4, v4, v3")
            for ks in range(4):
                a.e(f"v_xor_b32 v20, {2*ks}, v4"); a.e(f"v_lshl_add_u32 v{12+ks}, v20, 4, v2")
            for i in range(3): a.e(f"v_mov_b32 v{28+i}, 0")
            a.e(f"v_mov_b32 v2, {LDS_BYTES-4}"); a.e("ds_write_b32 v2, v28")
            a.e("v_and_b32 v2, 31, v1"); a.e("v_lshlrev_b32 v2, 5, v2"); a.e(f"s_lshl_b32 s54, {sHP}, 10"); a.e(f"s_add_u32 s54, s54, {CS}"); a.e("v_add_u32 v2, s54, v2")
            a.e("v_lshl_add_u32 v21, v3, 4, v2"); a.e("v_lshl_add_u32 v20, v3, 2, v2"); a.e(f"s_lshl_b32 s54, {sTG}, 3"); a.e("v_add_u32 v20, s54, v20")
            a.e("v_and_b32 v2, 1, v1"); a.e(f"s_lshl_b32 s54, {sTB}, 3"); a.e(f"s_lshl_b32 s55, {sTG}, 1"); a.e("s_add_u32 s54, s54, s55"); a.e("v_add_u32 v2, s54, v2")
            a.e("s_lshl_b32 s60, s54, 7"); a.e(f"s_add_u32 s60, s60, {ST_OFF}")
            a.e(f"s_add_u32 s54, {sHG}, 128"); a.e("v_mov_b32 v3, s54"); a.e("v_cmp_gt_u32 vcc, 2, v1"); a.e("v_cndmask_b32 v2, v3, v2, vcc")
            a.e("v_lshlrev_b32 v31, 7, v2"); a.e(f"v_add_u32 v31, {FL_LN}, v31")
            self.p2_ids()
        self.ln_block(pre)
        dma4(0)
        self.nonce_get(22, 4)
        a.e("s_lshl_b32 s86, s62, 7"); a.e(f"s_add_u32 s86, s86, {FL_LN}")
        a.wait(v=("lnst",)); a.e("s_barrier")
        self.flag_store("s86"); self.stamp(3)
        dma4(1); dma4(2)
        self.stamp(4)
        def fb(j, m): return (112 if m == 0 else 40) + 4 * (j % 4)
        def kvread(j):
            c, ks = j >> 2, j & 3
            r = XR + 4 * j
            a.e(f"ds_read_b128 v[{r}:{r+3}], v{12+ks} offset:{(c % 4)*16384}", tag=f"f{j}")
            for m in range(2):
                r = fb(j, m); off = (c % 4) * 16384 + m * 8192 + ks * 2048
                a.e(f"ds_read_b64_tr_b16 v[{r}:{r+1}], v17 offset:{off}", tag=f"f{j}"); a.e(f"ds_read_b64_tr_b16 v[{r+2}:{r+3}], v17 offset:{off+512}", tag=f"f{j}")
        def csread(vaddr, off, r):
            a.e(f"ds_read_b64_tr_b16 v[{r}:{r+1}], v{vaddr} offset:{off}", tag="cs"); a.e(f"ds_read_b64_tr_b16 v[{r+2}:{r+3}], v{vaddr} offset:{off+512}", tag="cs")
        def csacc(reg, r):
            for i in range(4): a.e(f"v_dot2_f32_bf16 v{reg}, v{r+i}, s89, v{reg}")
        pend = []
        for j in range(32):
            c, ks = j >> 2, j & 3
            if ks == 0:
                self.stamp(16 + c, fine=True)
                a.wait(v=(f"d{c}", f"d{c+1}") if c < 7 else ("d7",))
                a.e("s_barrier")
                if c == 0: kvread(0); kvread(1)
                if c + 3 < 10 and (c + 3 < 8 or c >= 5): pend = [(c + 3, i) for i in (0, 2, 1, 3)]
                csread(19, (c % 4) * 16384, 32); csread(19, (c % 4) * 16384 + 8192, 36)
                if c == 1:
                    a.wait(v=("wphi",))
                    for i in range(4): a.e(f"v_lshl_or_b32 v{24+i}, v{97+2*i}, 16, v{96+2*i}")
                if c == 5: self.poll_issue("v31", 22, "pf")
                if c == 6:
                    self.poll_check("v31", 22, "pf")
                    a.e("v_and_b32 v2, 31, v1"); a.e("v_lshlrev_b32 v2, 3, v2")
                    a.e(f"buffer_load_dwordx2 v[22:23], v2, {WS}, s60 offen sc1", tag="stat")
            if j + 2 < 32: kvread(j + 2)
            a.wait(l=(f"f{j}",))
            for m in range(2):
                acc = (AK, AV)[m]; r = fb(j, m)
                a.e(f"v_mfma_f32_32x32x16_bf16 v[{acc}:{acc+15}], v[{r}:{r+3}], v[{XR+4*j}:{XR+4*j+3}], " + ("0" if j == 0 else f"v[{acc}:{acc+15}]"))
                if m == 0 and pend: dma(*pend.pop(0))
            if ks == 2: a.wait(l=("cs",)); csacc(28, 32); csacc(29, 36)
        self.stamp(5)
        a.e("ds_write_b32 v20, v28"); a.e("ds_write_b32 v20, v29 offset:2048")
        PKB, VB = 32768, 98304
        a.e("v_and_b32 v3, 31, v1"); a.e("v_lshlrev_b32 v3, 6, v3"); a.e(f"s_lshl_b32 s54, {sTG}, 11"); a.e("v_add_u32 v3, s54, v3")
        a.e("v_bfe_u32 v4, v1, 1, 3"); a.e("v_lshrrev_b32 v2, 5, v1"); a.e("v_xor_b32 v4, v4, v2")
        a.e(f"s_lshl_b32 s54, {sHP}, 14"); a.e(f"s_add_u32 s54, s54, {PKB}"); a.e(f"s_lshl_b32 s55, {sHP}, 13"); a.e(f"s_add_u32 s55, s55, {VB}")
        for q in range(4):
            a.e(f"v_xor_b32 v{12+q}, {2*q}, v4"); a.e(f"v_lshl_add_u32 v{12+q}, v{12+q}, 3, v3")
            a.e(f"v_add_u32 v{8+q}, s55, v{12+q}"); a.e(f"v_add_u32 v{12+q}, s54, v{12+q}")
        def correct(items, t):
            for n, (ci, acc) in enumerate(items): a.e(f"ds_read_b128 v[{t+8+8*n}:{t+11+8*n}], v21 offset:{ci*2048}")
            a.e("s_waitcnt lgkmcnt(0)")
            for n, (ci, acc) in enumerate(items):
                c = t + 8 + 8 * n; b = t + 4 + 8 * n
                a.e(f"v_add_f32 v{c}, v{c}, v{c+1}"); a.e(f"v_add_f32 v{c+2}, v{c+2}, v{c+3}"); a.e(f"v_add_f32 v{c}, v{c}, v{c+2}")
                a.e(f"v_cvt_pk_bf16_f32 v{b+2}, v{c}, v{c}"); a.e(f"v_and_b32 v{b+2}, 0xffff0000, v{b+2}")
                a.e(f"v_sub_f32 v{c}, v{c}, v{b+2}"); a.e(f"v_cvt_pk_bf16_f32 v{b}, v{b+2}, v{c}")
                a.e(f"v_and_b32 v{b+3}, 0xffff0000, v{b}"); a.e(f"v_sub_f32 v{c}, v{c}, v{b+3}"); a.e(f"v_cvt_pk_bf16_f32 v{b+1}, v{b+2}, v{c}")
                a.e(f"v_mfma_f32_32x32x16_bf16 v[{acc}:{acc+15}], v[{b}:{b+3}], v[56:59], v[{acc}:{acc+15}]")
        a.wait(v=("stat",))
        self.stamp(24, fine=True)
        a.e("v_sub_f32 v56, 0, v22"); a.e("v_cvt_pk_bf16_f32 v56, v56, v56"); a.e("v_and_b32 v57, 0xffff0000, v56")
        a.e("v_add_f32 v58, v22, v57"); a.e("v_sub_f32 v58, 0, v58"); a.e("v_cvt_pk_bf16_f32 v57, v58, v57")
        a.e("v_mov_b32 v58, 0"); a.e("v_mov_b32 v59, 0")
        a.e(f"v_mul_f32 v22, {f2h(LOG2E)}, v23")
        a.e("s_waitcnt lgkmcnt(0)"); a.e("s_barrier")
        self.stamp(25, fine=True)
        correct([(0, AK), (1, AV)], 32)
        self.stamp(26, fine=True)
        self.pack(AK, AK, 8)
        def feats(src, store):
            a.e(f"v_mfma_f32_32x32x16_bf16 v[96:111], v[24:27], v[{src}:{src+3}], 0")
            a.e(f"v_mfma_f32_32x32x16_bf16 v[112:127], v[24:27], v[{src+4}:{src+7}], 0")
            l0 = self.capture(lambda: (self.feat(96, 104, 32, 22), store(0, 96, 104)))
            l1 = self.capture(lambda: (self.feat(120, 112, 36, 22), store(1, 120, 112)))
            return [x for p in zip(l0, l1) for x in p]
        def store_k(hh, P, Gm):
            self.pack(Gm, Gm, 4); self.pack(Gm + 4, P, 4)
            for q in range(4): a.e(f"ds_write_b64 v{12+q}, v[{Gm+2*q}:{Gm+2*q+1}] offset:{hh*8192}")
        a.e("v_lshrrev_b32 v2, 3, v1"); a.e("v_lshlrev_b32 v2, 12, v2"); a.e("v_and_b32 v3, 7, v1"); a.e("v_lshl_add_u32 v61, v3, 7, v2")
        a.e(f"s_mul_i32 s66, {sJ}, {86*4096}"); a.e(f"s_lshr_b32 s54, {sG}, 1"); a.e("s_lshl_b32 s54, s54, 10"); a.e("s_add_u32 s66, s66, s54")
        a.e(f"s_lshl_b32 s54, {sW}, 14"); a.e("s_add_u32 s54, s54, s66")
        if TOUCH:
            a.e("s_mov_b64 exec, 0xffffffff")
            a.e(f"buffer_load_dword v62, v61, {W2}, s54 offen", tag="touch")
            a.e("s_mov_b64 exec, -1")
        fl = feats(AK, store_k)
        for i in range(16): a.e(f"v_mul_f32 v{AV+i}, v{AV+i}, v23")
        self.pack(AV, AV, 8)
        for q in range(4): a.e(f"ds_write_b64 v{8+q}, v[{AV+2*q}:{AV+2*q+1}]")
        for s_, t_ in fl: a.e(s_, tag=t_)
        self.stamp(27, fine=True)
        a.e("v_bfe_u32 v2, v1, 2, 2"); a.e("v_lshrrev_b32 v3, 5, v1"); a.e("v_lshl_add_u32 v4, v3, 3, v2")
        a.e("v_lshrrev_b32 v32, 1, v4"); a.e("v_lshlrev_b32 v4, 6, v4")
        a.e("v_and_b32 v33, 3, v1"); a.e("v_bfe_u32 v34, v1, 4, 1"); a.e("v_lshl_add_u32 v34, v34, 2, v33")
        a.e(f"s_and_b32 s54, {sW}, 1"); a.e("s_lshl_b32 s54, s54, 2"); a.e("v_add_u32 v33, s54, v33")
        a.e(f"s_lshl_b32 s54, {sTG}, 13"); a.e(f"s_add_u32 s54, s54, {PKB}"); a.e(f"s_lshr_b32 s55, {sTG}, 1"); a.e("s_lshl_b32 s55, s55, 13"); a.e(f"s_add_u32 s55, s55, {VB}")
        a.e("v_xor_b32 v34, v34, v32"); a.e("v_xor_b32 v33, v33, v32")
        a.e("v_lshl_add_u32 v36, v34, 3, v4"); a.e("v_add_u32 v36, s54, v36"); a.e("v_xor_b32 v37, 16, v36")
        a.e("v_lshl_add_u32 v38, v33, 3, v4"); a.e("v_add_u32 v38, s55, v38"); a.e("v_xor_b32 v39, 16, v38")
        a.e("v_and_b32 v35, 31, v1"); a.e("v_lshlrev_b32 v35, 2, v35"); a.e("v_lshl_add_u32 v35, v3, 9, v35")
        a.e(f"s_lshl_b32 s60, {sHG}, 14"); a.e(f"s_mul_i32 s55, {sTG}, 2176"); a.e("s_add_u32 s60, s60, s55"); a.e(f"s_add_u32 s60, s60, {KV_OFF}")
        a.e("v_and_b32 v2, 16, v1"); a.e("v_cmp_eq_u32 vcc, 0, v2"); a.e("v_mov_b32 v32, s89")
        a.wait(v=("d8", "d9"))
        a.e("s_waitcnt lgkmcnt(0)"); a.e("s_barrier")
        self.stamp(6)
        lab = a.newlabel("Lkv")
        a.e(f"s_cmp_gt_u32 {sW}, 3"); a.e(f"s_cbranch_scc1 {lab}")
        for k in range(8):
            b = 64 + 8 * k
            a.e(f"ds_read_b64_tr_b16 v[{b}:{b+1}], v38 offset:{k*1024}", tag=f"k{k}"); a.e(f"ds_read_b64_tr_b16 v[{b+2}:{b+3}], v39 offset:{k*1024+256}", tag=f"k{k}")
            a.e(f"ds_read_b64_tr_b16 v[{b+4}:{b+5}], v36 offset:{k*1024}", tag=f"k{k}"); a.e(f"ds_read_b64_tr_b16 v[{b+6}:{b+7}], v37 offset:{k*1024+256}", tag=f"k{k}")
        for k in range(8):
            b = 64 + 8 * k
            a.wait(l=(f"k{k}",))
            for i in range(4): a.e(f"v_cndmask_b32 v{b+i}, v32, v{b+i}, vcc")
            a.e(f"v_mfma_f32_32x32x16_bf16 v[40:55], v[{b}:{b+3}], v[{b+4}:{b+7}], " + ("0" if k == 0 else "v[40:55]"))
        a.track = False
        for r in range(8):
            a.e(f"buffer_atomic_add_f32 v{40+r}, v35, {WS}, s60 offen offset:{(8*(r>>2)+(r&3))*128} sc1")
        a.e("s_mov_b64 exec, 0xffffffff")
        a.e(f"buffer_atomic_add_f32 v48, v35, {WS}, s60 offen offset:2048 sc1")
        a.e("s_mov_b64 exec, -1")
        lab2 = a.newlabel("Lkv2")
        a.e(f"s_branch {lab2}")
        a.label(lab)
        if TOUCH:
            a.e(f"s_lshl_b32 s54, {sW}, 15"); a.e("s_add_u32 s54, s54, s66")
            a.e(f"buffer_load_dword v62, v61, {W2}, s54 offen")
        a.label(lab2)
        a.track = True
        self.stamp(7)
        def qread(j):
            c, ks = j >> 2, j & 3
            r = 112 + 4 * (j % 4); off = (c & 3) * 8192 + ks * 2048; va = 16 + (c >> 2)
            a.e(f"ds_read_b64_tr_b16 v[{r}:{r+1}], v{va} offset:{off}", tag=f"f{j}"); a.e(f"ds_read_b64_tr_b16 v[{r+2}:{r+3}], v{va} offset:{off+512}", tag=f"f{j}")
        for j in range(3): qread(j)
        for j in range(32):
            c, ks = j >> 2, j & 3
            if j == KVJ:
                lk = a.newlabel("Lkf")
                a.e(f"s_cmp_gt_u32 {sW}, 3"); a.e(f"s_cbranch_scc1 {lk}")
                a.track = False
                a.e(f"v_mov_b32 v2, {sN0}"); a.e(f"v_mov_b32 v3, {sN1}"); a.e("v_mov_b32 v4, 0"); a.e("v_mov_b32 v5, 1"); a.e(f"v_mov_b32 v68, {LDS_BYTES-4}")
                a.e("s_waitcnt vmcnt(0)"); a.e("s_mov_b64 exec, 1")
                a.e("ds_add_rtn_u32 v5, v68, v5"); a.e("s_waitcnt lgkmcnt(0)"); a.e("v_readfirstlane_b32 s95, v5")
                lk2 = a.newlabel("Lkf2")
                a.e("s_cmp_lg_u32 s95, 3"); a.e(f"s_cbranch_scc1 {lk2}")
                a.e(f"buffer_store_dwordx2 v[2:3], v4, {WS}, s63 offen sc1")
                a.label(lk2); a.e("s_mov_b64 exec, -1")
                self.stamp(8)
                a.track = True
                a.label(lk)
            if ks == 0: csread(18 + (c >> 2), (c & 3) * 8192, 64)
            if j + 3 < 32: qread(j + 3)
            a.wait(l=(f"f{j}",))
            r = 112 + 4 * (j % 4)
            a.e(f"v_mfma_f32_32x32x16_bf16 v[{AQ}:{AQ+15}], v[{r}:{r+3}], v[{XR+4*j}:{XR+4*j+3}], " + ("0" if j == 0 else f"v[{AQ}:{AQ+15}]"))
            if ks == 3: a.wait(l=("cs",)); csacc(30, 64)
        assert not pend
        self.stamp(28, fine=True)
        a.e("s_nop 2"); a.e("ds_write_b32 v20, v30 offset:4096")
        a.e("v_and_b32 v2, 15, v1"); a.e("v_lshlrev_b32 v2, 3, v2"); a.e(f"v_add_u32 v2, {sHG}, v2")
        a.e("v_lshlrev_b32 v31, 7, v2"); a.e(f"v_add_u32 v31, {FL_KV}, v31")
        a.e("s_waitcnt lgkmcnt(0)"); a.e("s_barrier")
        correct([(2, AQ)], 32)
        self.poll_issue("v31", 28, "pf")
        self.pack(AK, AQ, 8)
        def store_q(hh, P, Gm):
            self.pack(AV + 8 * hh, Gm, 4); self.pack(AV + 8 * hh + 4, P, 4)
        fl = feats(AK, store_q)
        KS = CS + 6144
        half = len(fl) // 2
        for s_, t_ in fl[:half]: a.e(s_, tag=t_)
        self.stamp(29, fine=True)
        self.poll_check("v31", 28, "pf")
        self.stamp(9)
        a.e("v_lshlrev_b32 v2, 4, v0"); a.e(f"s_lshl_b32 s54, {sHG}, 14"); a.e(f"s_add_u32 s54, s54, {KV_OFF}")
        a.e(f"buffer_load_dwordx4 v[40:43], v2, {WS}, s54 offen sc1", tag="kv")
        a.e("s_add_u32 s54, s54, 8192")
        a.e(f"buffer_load_dwordx4 v[44:47], v2, {WS}, s54 offen sc1", tag="kv")
        for s_, t_ in fl[half:]: a.e(s_, tag=t_)
        a.e("v_lshrrev_b32 v3, 3, v0"); a.e("v_mul_u32_u24 v3, 72, v3"); a.e("v_and_b32 v4, 7, v0"); a.e("v_lshl_add_u32 v3, v4, 3, v3"); a.e(f"v_add_u32 v3, {KS}, v3")
        a.e("v_and_b32 v2, 31, v1"); a.e("v_min_u32 v2, 16, v2"); a.e("v_mul_u32_u24 v2, 72, v2"); a.e("v_lshrrev_b32 v4, 5, v1"); a.e("v_lshl_add_u32 v2, v4, 3, v2")
        a.e(f"s_mul_i32 s54, {sHP}, {34*72}"); a.e(f"s_add_u32 s54, s54, {KS}"); a.e("v_add_u32 v2, s54, v2")
        a.e(f"s_lshl_b32 s54, {sTB}, 2"); a.e(f"s_add_u32 s54, s54, {sTG}"); a.e("s_lshl_b32 s54, s54, 15")
        a.e(f"s_lshl_b32 s55, {sHG}, 1"); a.e(f"s_add_u32 s55, s55, {sHP}"); a.e("s_lshl_b32 s55, s55, 11"); a.e("s_add_u32 s54, s54, s55"); a.e(f"s_add_u32 s54, s54, {OF_OFF}")
        self.stamp(30, fine=True)
        a.wait(v=("kv",))
        self.stamp(31, fine=True)
        self.pack(48, 40, 4)
        a.e("ds_write_b64 v3, v[48:49]")
        a.e("v_cmp_gt_u32 vcc, 32, v0"); a.e("s_and_saveexec_b64 s[90:91], vcc")
        a.e(f"ds_write_b64 v3, v[50:51] offset:{64*72}")
        a.e("s_mov_b64 exec, -1")
        a.e("s_waitcnt lgkmcnt(0)"); a.e("s_barrier")
        for hh in range(2):
            for q in range(4):
                r = 128 + 8 * hh + 2 * q
                a.e(f"ds_read_b64 v[{r}:{r+1}], v2 offset:{hh*17*72 + q*16}", tag=f"kf{hh}")
        for hh in range(2):
            a.wait(l=(f"kf{hh}",))
            d = 160 + 16 * hh; r = 128 + 8 * hh; p = AV + 8 * hh
            a.e(f"v_mfma_f32_32x32x16_bf16 v[{d}:{d+15}], v[{r}:{r+3}], v[{p}:{p+3}], 0")
            a.e(f"v_mfma_f32_32x32x16_bf16 v[{d}:{d+15}], v[{r+4}:{r+7}], v[{p+4}:{p+7}], v[{d}:{d+15}]")
        for hh in range(2):
            d = 160 + 16 * hh
            a.e(f"v_add_f32 v{d+8}, {f2h(1e-6)}, v{d+8}"); a.e(f"v_rcp_f32 v{d+8}, v{d+8}")
            for i in range(8): a.e(f"v_mul_f32 v{d+i}, v{d+i}, v{d+8}")
            o = 32 + 4 * hh
            self.pack(o, d, 4)
            a.e(f"buffer_store_dwordx4 v[{o}:{o+3}], v6, {WS}, s54 offen offset:{hh*1024} sc1")
        a.e("s_waitcnt vmcnt(0)"); a.e("s_barrier")
        self.flag_store("s61")
        self.stamp(10)
        self.p2_voff(8)
        for n in range(12): self.p2_early(n, 0)
    def role_b(self):
        a = self.a
        sDB, sFB, sKH, sPH, sROT = "s56", "s57", "s58", "s59", "s51"
        NWS, WSB, NPS, PSB = NWS_, 12288, NPS_, 8192
        PBASE = NWS * WSB; assert PBASE + NPS * PSB <= LDS_BYTES - 64
        CNT = LDS_BYTES - 16
        if BMAP == 24:
            a.e(f"s_lshr_b32 {sFB}, {sG}, 1"); a.e(f"s_lshl_b32 {sFB}, {sFB}, 2"); a.e(f"s_bfe_u32 s54, {sJ}, 0x20002"); a.e(f"s_add_u32 {sFB}, {sFB}, s54")
            a.e(f"s_and_b32 {sDB}, {sG}, 1"); a.e(f"s_lshl_b32 {sDB}, {sDB}, 2"); a.e(f"s_and_b32 s55, {sJ}, 3"); a.e(f"s_add_u32 {sDB}, {sDB}, s55")
            a.e(f"s_add_u32 {sROT}, s54, s55"); a.e(f"s_lshl_b32 {sROT}, {sROT}, 3"); a.e(f"s_and_b32 s54, {sDB}, 4"); a.e(f"s_add_u32 {sROT}, {sROT}, s54")
        else:
            a.e(f"s_lshl_b32 {sFB}, {sG}, 1"); a.e(f"s_bfe_u32 s54, {sJ}, 0x10003"); a.e(f"s_add_u32 {sFB}, {sFB}, s54"); a.e(f"s_and_b32 {sDB}, {sJ}, 7")
            a.e(f"s_lshl_b32 {sROT}, {sDB}, 2"); a.e("s_lshl_b32 s54, s54, 4"); a.e(f"s_add_u32 {sROT}, {sROT}, s54")
        a.e(f"s_cmp_ge_u32 {sFB}, 15"); a.e("s_cbranch_scc1 L_roleS")
        q0 = list(a.vq)
        a.e(f"s_cmp_lt_u32 {sW}, 4"); a.e("s_cbranch_scc1 L_bcons")
        a.e(f"s_and_b32 s67, {sW}, 3")
        a.e(f"s_mul_i32 s54, s67, {16*2752}"); a.e(f"s_mul_i32 s55, {sFB}, 192"); a.e("s_add_u32 s54, s54, s55")
        for i in range(3):
            a.e(f"v_add_u32 v2, {64*i}, v1"); a.e("v_mul_u32_u24 v3, 5462, v2"); a.e("v_lshrrev_b32 v3, 16, v3")
            a.e("v_mul_u32_u24 v4, 12, v3"); a.e("v_sub_u32 v4, v2, v4")
            a.e(f"v_mul_u32_u24 v3, 2752, v3"); a.e(f"v_lshl_add_u32 v{56+i}, v4, 4, v3"); a.e(f"v_add_u32 v{56+i}, s54, v{56+i}")
        a.e("s_mul_i32 s64, s67, 3072")
        def wdma(n):
            a.e(f"s_add_u32 s65, {sROT}, {n}"); a.e("s_and_b32 s65, s65, 31"); a.e(f"s_mul_i32 s65, s65, {64*2752}")
            for i in range(3):
                a.e(f"s_add_u32 m0, s64, {(n % NWS)*WSB + i*1024}")
                a.e(f"buffer_load_dwordx4 v{56+i}, {W1}, s65 offen {'nt ' if n < NT else ''}lds", tag=f"w{n}")
        def pdma(n):
            a.e(f"s_add_u32 s65, {sROT}, {n}"); a.e("s_and_b32 s65, s65, 31"); a.e("s_lshl_b32 s65, s65, 12"); a.e("s_add_u32 s65, s65, s60")
            a.e(f"s_add_u32 m0, s63, {(n % NPS)*PSB}")
            a.e(f"buffer_load_dwordx4 v6, {WS}, s65 offen sc1 lds", tag=f"p{n}")
            a.e(f"buffer_load_dwordx4 v6, {WS}, s65 offen offset:1024 sc1 lds", tag=f"p{n}")
        a.e(f"s_and_b32 s54, {sJ}, 15"); a.e("s_lshl_b32 s54, s54, 2"); a.e("s_add_u32 s54, s54, s67")
        a.e("v_lshrrev_b32 v10, 3, v1"); a.e("v_mul_u32_u24 v10, 3072, v10"); a.e("v_bfe_u32 v11, v1, 2, 1"); a.e("v_lshl_add_u32 v10, v11, 10, v10")
        a.e("v_and_b32 v11, 3, v1"); a.e("v_lshl_add_u32 v10, v11, 7, v10")
        a.e("s_mul_i32 s55, s54, 24576"); a.e(f"s_and_b32 s65, {sG}, 1"); a.e("s_lshl_b32 s65, s65, 9"); a.e("s_add_u32 s55, s55, s65"); a.e("s_add_u32 s55, s55, 1024")
        a.e(f"buffer_load_dword v13, v10, {WQKV}, s55 offen", tag="warm")
        a.e("s_lshr_b32 s55, s54, 4"); a.e("s_lshl_b32 s55, s55, 17"); a.e("s_and_b32 s54, s54, 15"); a.e("s_lshl_b32 s54, s54, 12"); a.e("s_add_u32 s55, s55, s54")
        a.e("s_xor_b32 s65, s65, 512"); a.e("s_lshl_b32 s65, s65, 7"); a.e("s_add_u32 s55, s55, s65"); a.e(f"s_lshr_b32 s65, {sG}, 1"); a.e("s_lshl_b32 s65, s65, 19"); a.e("s_add_u32 s55, s55, s65")
        a.e("v_lshlrev_b32 v10, 7, v1"); a.e("s_mov_b64 exec, 0xffffffff")
        a.e(f"buffer_load_dword v12, v10, {X}, s55 offen", tag="warm")
        a.e("s_mov_b64 exec, -1")
        self.nonce_issue(8, 4)
        a.e(f"s_lshl_b32 s60, {sDB}, 1"); a.e("s_lshr_b32 s54, s67, 1"); a.e("s_add_u32 s60, s60, s54"); a.e("s_lshl_b32 s60, s60, 17")
        a.e("s_and_b32 s54, s67, 1"); a.e("s_lshl_b32 s54, s54, 11"); a.e("s_add_u32 s60, s60, s54"); a.e(f"s_add_u32 s60, s60, {HF_OFF}")
        a.e("s_lshl_b32 s63, s67, 11"); a.e(f"s_add_u32 s63, s63, {PBASE}")
        self.p2_ids(); self.p2_voff(4)
        if WAITW: self.nonce_get(8, 4)
        self.stamp(2)
        for n in range(PRE): wdma(n)
        if not WAITW: self.nonce_get(8, 4)
        self.stamp(3)
        a.e("s_barrier")
        for n in range(NPS - 1): pdma(n)
        a.wait(v=("p0", "p1"))
        a.e("s_barrier")
        LASTB = 32 - NPS + 2
        nw = PRE
        for t in range(LASTB):
            if t + NPS - 1 < 32: pdma(t + NPS - 1)
            k = 0
            while nw < 32 and nw <= t + NWS - 1 and k < 2: wdma(nw); nw += 1; k += 1
            a.wait(v=(f"p{t+2}", f"w{t+2}") + (("p31", "w31") if t == LASTB - 1 else ()))
            a.e("s_barrier")
        assert nw == 32
        busy = [(n % NWS * WSB, WSB) for n in range(LASTB, 32)] + [(PBASE + n % NPS * PSB, PSB) for n in range(LASTB, 32)]
        def free(lo, ln, extra=()): return all(lo + ln <= b or b + l <= lo for b, l in list(busy) + list(extra))
        X0 = [x for x in range(0, 20481, 4096) if free(x, 12288)][0]
        X1 = [x for x in list(range(131072, 147457, 4096)) + list(range(0, 20481, 4096)) if free(x, 12288, [(X0, 12288)])][0]
        XCH = (X0, X1)
        first = [n for n in range(12) if free((4 + n) * 8192, 8192)]
        for n in first: self.p2_early(n, 0); self.p2_early(n, 1)
        a.e(f"v_mov_b32 v25, {CNT}")
        lp = a.newlabel("Lbw"); dn = a.newlabel("Lbd")
        a.e("s_mov_b32 s96, 0"); a.label(lp)
        a.e("ds_read_b32 v2, v25"); a.e("s_waitcnt lgkmcnt(0)"); a.e("v_readfirstlane_b32 s95, v2")
        a.e("s_cmp_ge_u32 s95, 4"); a.e(f"s_cbranch_scc1 {dn}")
        a.e("s_sleep 1"); a.e("s_add_u32 s96, s96, 1"); a.e("s_cmp_lt_u32 s96, 1000000"); a.e(f"s_cbranch_scc1 {lp}")
        a.label(dn)
        for n in range(12):
            if n not in first: self.p2_early(n, 0); self.p2_early(n, 1)
        print("B: LASTB", LASTB, "XCH", XCH, "first", first)
        a.e("s_branch L_phase2")
        a.label("L_bcons"); a.vq = list(q0); a.lq = []
        a.e(f"s_lshr_b32 {sKH}, {sW}, 1"); a.e(f"s_and_b32 {sPH}, {sW}, 1")
        self.nonce_issue(8, 4)
        ACC, FB = 64, 112
        a.e("v_lshrrev_b32 v3, 5, v1"); a.e("v_lshlrev_b32 v2, 3, v3"); a.e(f"s_mul_i32 s54, {sFB}, 192"); a.e(f"s_mul_i32 s55, {sKH}, 96"); a.e("s_add_u32 s54, s54, s55")
        for i in range(6):
            a.e(f"buffer_load_dwordx2 v[{40+2*i}:{41+2*i}], v2, {B1}, s54 offen offset:{16*i}", tag="b1")
        self.p2_ids()
        a.e("v_bfe_u32 v2, v1, 2, 2"); a.e("v_lshl_add_u32 v2, v3, 3, v2"); a.e("v_mul_u32_u24 v2, 192, v2"); a.e("v_and_b32 v5, 3, v1"); a.e("v_lshl_add_u32 v2, v5, 3, v2")
        a.e(f"s_mul_i32 s54, {sKH}, {32*192}"); a.e("v_add_u32 v2, s54, v2")
        a.e("v_bfe_u32 v5, v1, 4, 1"); a.e(f"s_mul_i32 s54, {sKH}, 3"); a.e("v_add_u32 v5, s54, v5")
        for f in range(3):
            a.e(f"v_add_u32 v10, {2*f}, v5"); a.e("v_subrev_u32 v11, 6, v10"); a.e("v_min_u32 v10, v10, v11")
            a.e(f"v_lshl_add_u32 v{16+f}, v10, 5, v2"); a.e(f"v_add_u32 v{19+f}, {5*WSB}, v{16+f}")
        a.e(f"s_lshl_b32 s54, {sPH}, 12"); a.e(f"s_lshl_b32 s55, {sKH}, 11"); a.e("s_add_u32 s54, s54, s55"); a.e(f"s_add_u32 s54, s54, {PBASE}"); a.e("v_add_u32 v22, s54, v6")
        a.e(f"s_mul_i32 s54, {sPH}, 6144"); a.e("v_add_u32 v2, s54, v6"); a.e(f"s_cmp_eq_u32 {sKH}, 0")
        a.e(f"s_cselect_b32 s54, {XCH[0]}, {XCH[1]}") if False else None
        a.e(f"s_mov_b32 s54, {XCH[0]}"); a.e(f"s_mov_b32 s55, {XCH[1]}"); a.e("s_cselect_b32 s65, s54, s55"); a.e("s_cselect_b32 s66, s55, s54")
        a.e("v_add_u32 v23, s65, v2"); a.e("v_add_u32 v24, s66, v2")
        a.e(f"v_mov_b32 v25, {CNT}")
        a.e(f"s_lshl_b32 s60, {sDB}, 1"); a.e(f"s_add_u32 s60, s60, {sPH}"); a.e(f"s_mul_i32 s60, s60, {UPITCH}"); a.e(f"s_mul_i32 s54, {sFB}, 6"); a.e("s_add_u32 s60, s60, s54")
        a.e(f"s_mul_i32 s54, {sKH}, 3"); a.e("s_add_u32 s60, s60, s54"); a.e("s_lshl_b32 s60, s60, 10"); a.e(f"s_add_u32 s60, s60, {UF_OFF}")
        a.e(f"s_mul_i32 s61, {sDB}, 15"); a.e(f"s_add_u32 s61, s61, {sFB}"); a.e("s_lshl_b32 s61, s61, 7"); a.e(f"s_add_u32 s61, s61, {FL_U}")
        c0 = -2.0 * math.sqrt(2.0 / math.pi) * LOG2E
        a.e(f"v_mov_b32 v26, {f2h(c0 * 0.044715)}"); a.e(f"v_mov_b32 v27, {f2h(c0)}")
        a.e("v_and_b32 v2, 31, v1"); a.e(f"s_lshl_b32 s54, {sW}, 5"); a.e("v_add_u32 v2, s54, v2")
        a.e("v_lshlrev_b32 v10, 7, v2"); a.e(f"v_add_u32 v10, {FL_LN}, v10")
        a.wait(v=("b1",))
        self.unpack(ACC, 40, 12)
        for i in range(24): a.e(f"v_mov_b32 v{ACC+24+i}, 0")
        self.nonce_get(8, 4)
        self.poll("v10", nl=32)
        self.stamp(4)
        a.e("s_barrier")
        def rd(j):
            t, ks = j >> 1, j & 1
            b = FB + 16 * (j % 3)
            a.e(f"ds_read_b128 v[{b}:{b+3}], v22 offset:{(t % NPS)*PSB + ks*1024}", tag=f"f{j}")
            sl = t % NWS
            for f in range(3):
                off = (sl % 5) * WSB + ks * 3072; va = 16 + 3 * (sl // 5) + f; r = b + 4 + 4 * f
                a.e(f"ds_read_b64_tr_b16 v[{r}:{r+1}], v{va} offset:{off}", tag=f"f{j}"); a.e(f"ds_read_b64_tr_b16 v[{r+2}:{r+3}], v{va} offset:{off+768}", tag=f"f{j}")
        for j in range(64):
            t, ks = j >> 1, j & 1
            if ks == 0:
                if t % 2 == 0: self.stamp(16 + t // 2, fine=True)
                if t <= LASTB: a.e("s_barrier")
                if t == 0: rd(0); rd(1)
                if t == 1: a.e("v_mov_b32 v2, 0"); a.e("ds_write_b32 v25, v2"); a.e("ds_write_b32 v25, v2 offset:4")
            a.wait(l=(f"f{j}",))
            b = FB + 16 * (j % 3)
            for f in range(3):
                c = ACC + 16 * f
                a.e(f"v_mfma_f32_32x32x16_bf16 v[{c}:{c+15}], v[{b+4+4*f}:{b+7+4*f}], v[{b}:{b+3}], v[{c}:{c+15}]")
                if f == 0 and j + 2 < 64: rd(j + 2)
        self.stamp(5)
        for i in range(6): a.e(f"ds_write_b128 v24, v[{ACC+24+4*i}:{ACC+27+4*i}] offset:{i*1024}")
        a.e("s_waitcnt lgkmcnt(0)")
        self.lds_sync("v25", 4, 2)
        for i in range(6): a.e(f"ds_read_b128 v[{112+4*i}:{115+4*i}], v23 offset:{i*1024}", tag=f"x{i>>1}")
        for u in range(3):
            A = ACC + 8 * u; Pn = 112 + 8 * u; T = 136 + 8 * u
            a.wait(l=(f"x{u}",))
            for i in range(8): a.e(f"v_add_f32 v{A+i}, v{A+i}, v{Pn+i}")
            for i in range(8): a.e(f"v_mul_f32 v{T+i}, v{A+i}, v{A+i}")
            for i in range(8): a.e(f"v_fma_f32 v{T+i}, v{T+i}, v26, v27")
            for i in range(8): a.e(f"v_mul_f32 v{T+i}, v{T+i}, v{A+i}")
            for i in range(8): a.e(f"v_exp_f32 v{T+i}, v{T+i}")
            for i in range(8): a.e(f"v_add_f32 v{T+i}, 1.0, v{T+i}")
            for i in range(8): a.e(f"v_rcp_f32 v{T+i}, v{T+i}")
            for i in range(8): a.e(f"v_mul_f32 v{T+i}, v{T+i}, v{A+i}")
            o = 40 + 4 * u
            self.pack(o, T, 4)
            a.e(f"buffer_store_dwordx4 v[{o}:{o+3}], v6, {WS}, s60 offen offset:{u*1024} sc1")
        self.stamp(6)
        a.e(f"v_mov_b32 v2, {sN0}"); a.e(f"v_mov_b32 v3, {sN1}"); a.e("v_mov_b32 v5, 1")
        a.e("s_mov_b64 exec, 1")
        a.e("s_waitcnt vmcnt(0)")
        a.e("ds_add_rtn_u32 v5, v25, v5 offset:4"); a.e("s_waitcnt lgkmcnt(0)"); a.e("v_readfirstlane_b32 s95, v5")
        lab = a.newlabel("Lnf")
        a.e("s_cmp_lg_u32 s95, 3"); a.e(f"s_cbranch_scc1 {lab}")
        a.e(f"buffer_store_dwordx2 v[2:3], v4, {WS}, s61 offen sc1")
        a.label(lab)
        a.e("s_mov_b64 exec, -1")
        self.stamp(10)
    def role_s(self):
        a = self.a
        self.nonce_issue(8, 4)
        for i in range(4): a.e(f"v_mov_b32 v{28+i}, 0")
        a.e("v_lshlrev_b32 v23, 4, v0"); a.e("s_lshl_b32 s54, s56, 14"); a.e(f"s_add_u32 s54, s54, {KV_OFF}")
        a.e(f"buffer_store_dwordx4 v[28:31], v23, {WS}, s54 offen sc1")
        a.e("s_add_u32 s54, s54, 8192")
        a.e(f"buffer_store_dwordx4 v[28:31], v23, {WS}, s54 offen sc1")
        self.p2_ids(); self.p2_voff(8)
        a.e("s_waitcnt vmcnt(0)")
        self.nonce_get(8, 4)
        a.e("s_barrier")
        a.e("s_add_u32 s54, s56, 128"); a.e("s_lshl_b32 s54, s54, 7"); a.e(f"s_add_u32 s54, s54, {FL_LN}")
        self.flag_store("s54")
        self.stamp(3)
        a.e("v_lshlrev_b32 v10, 7, v1"); a.e(f"v_add_u32 v10, {FL_KV}, v10")
        self.poll("v10", nl=1)
        for n in range(12): self.p2_early(n, 0)
    def phase2(self):
        a = self.a
        a.vq = []; a.lq = []
        sDB, sTB, sKH, sPH = "s100", "s101", "s58", "s59"
        FIN = 4 * 8192
        a.e("v_lshrrev_b32 v2, 3, v0"); a.e("v_and_b32 v3, 7, v0"); a.e("v_lshlrev_b32 v56, 10, v2"); a.e("v_lshl_add_u32 v56, v3, 4, v56")
        a.e(f"s_lshl_b32 s67, {sTB}, 16"); a.e(f"s_lshl_b32 s54, {sDB}, 7"); a.e("s_add_u32 s67, s67, s54")
        a.e(f"buffer_load_dwordx4 v[96:99], v56, {X}, s67 offen", tag="xt")
        a.e("v_lshlrev_b32 v4, 1, v2"); a.e(f"s_lshl_b32 s54, {sTB}, 7")
        a.e(f"buffer_load_ushort v52, v4, {B2}, s54 offen", tag="xt")
        a.e("v_mul_u32_u24 v57, 272, v2"); a.e("v_lshl_add_u32 v57, v3, 5, v57")
        a.e(f"v_mov_b32 v53, {f2h(-LOG2E)}")
        W2SLOT = {n: 4 + n for n in range(12)}; W2SLOT.update({12: 0, 13: 1, 14: 2, 15: 3, 16: 16, 17: 17, 18: 18, 19: 19, 20: 16, 21: 17})
        WOSLOT = {k: 4 + k for k in range(8)}; OSLOT = {k: (12 + k) % 16 for k in range(8)}
        USLOT = lambda n: n % 16
        def fin_read(dst):
            for arr in range(2):
                for hf in range(2):
                    r = dst + 8 * arr + 4 * hf
                    a.e(f"ds_read_b128 v[{r}:{r+3}], v57 offset:{FIN + arr*17408 + hf*16}")
            a.e("s_waitcnt lgkmcnt(0)")
        def s_collect():
            fin_read(16)
            for i in range(8): a.e(f"v_add_f32 v{100+i}, v{16+i}, v{24+i}")
        a.e(f"s_cmp_lt_u32 {sW}, 4"); a.e("s_cbranch_scc1 L_pcons")
        q0 = list(a.vq)
        self.p2_voff(4)
        a.e(f"s_and_b32 s66, {sW}, 3")
        a.e("v_and_b32 v3, 7, v1"); a.e(f"s_lshr_b32 s54, {sTB}, 1"); a.e("s_lshl_b32 s54, s54, 3"); a.e("v_add_u32 v3, s54, v3"); a.e("v_lshlrev_b32 v3, 7, v3"); a.e(f"v_add_u32 v59, {FL_O}, v3")
        a.e("v_min_u32 v2, 14, v1"); a.e(f"s_mul_i32 s54, {sDB}, 15"); a.e("v_add_u32 v2, s54, v2"); a.e("v_lshlrev_b32 v2, 7, v2"); a.e(f"v_add_u32 v58, {FL_U}, v2")
        a.e("s_lshr_b32 s55, s66, 1"); a.e("s_and_b32 s65, s66, 1"); a.e("s_lshl_b32 s65, s65, 11")
        a.e(f"s_lshl_b32 s60, {sDB}, 1"); a.e("s_add_u32 s60, s60, s55"); a.e(f"s_mul_i32 s60, s60, {UPITCH*1024}"); a.e("s_add_u32 s60, s60, s65"); a.e(f"s_add_u32 s60, s60, {UF_OFF}")
        a.e(f"s_lshl_b32 s61, {sTB}, 1"); a.e("s_add_u32 s61, s61, s55"); a.e("s_lshl_b32 s61, s61, 15"); a.e("s_add_u32 s61, s61, s65"); a.e(f"s_add_u32 s61, s61, {OF_OFF}")
        for n in range(22):
            self.p2_rot("s65", n); a.e("s_lshl_b32 s65, s65, 12"); a.e(f"s_add_u32 s{70+n}, s65, s60")
        def w2(n):
            for i in range(2): self.p2_w2(n, W2SLOT[n], i)
        def wo(k):
            a.e(f"s_add_u32 s65, s97, {k}"); a.e("s_and_b32 s65, s65, 7"); a.e("s_lshl_b32 s64, s65, 16")
            for i in range(2):
                a.e(f"s_add_u32 m0, s69, {WOSLOT[k]*8192 + i*1024}")
                a.e(f"buffer_load_dwordx4 v{62+i}, {WO}, s64 offen lds", tag=f"wo{k}")
        def od(k):
            a.e(f"s_add_u32 s65, s97, {k}"); a.e("s_and_b32 s65, s65, 7"); a.e("s_lshl_b32 s65, s65, 12"); a.e("s_add_u32 s65, s65, s61")
            a.e(f"s_add_u32 m0, s69, {OSLOT[k]*8192}")
            a.e(f"buffer_load_dwordx4 v6, {WS}, s65 offen sc1 lds", tag=f"o{k}"); a.e(f"buffer_load_dwordx4 v6, {WS}, s65 offen offset:1024 sc1 lds", tag=f"o{k}")
        def ud(n):
            a.e(f"s_add_u32 m0, s69, {USLOT(n)*8192}")
            a.e(f"buffer_load_dwordx4 v6, {WS}, s{70+n} offen sc1 lds", tag=f"u{n}"); a.e(f"buffer_load_dwordx4 v6, {WS}, s{70+n} offen offset:1024 sc1 lds", tag=f"u{n}")
        a.e("s_waitcnt vmcnt(0)"); a.e("s_barrier")
        for n in range(12, 20): w2(n)
        a.e("s_barrier")
        self.poll_issue("v59", 8, "pf")
        for k in range(8): wo(k)
        a.wait(v=("w2_17",)); a.e("s_barrier")
        self.poll_check("v59", 8, "pf")
        self.stamp(11)
        for k in range(4): od(k)
        a.e("s_barrier")
        for k in range(4, 8): od(k)
        w2(20); w2(21)
        a.wait(v=("o3",)); a.e("s_barrier")
        a.wait(v=("o7",)); a.e("s_barrier")
        a.e("s_barrier")
        a.e("s_barrier")
        s_collect()
        self.stamp(15)
        self.poll("v58", nl=15)
        a.e("s_waitcnt vmcnt(0)")
        a.e("s_barrier")
        self.stamp(12)
        UB = [2, 4, 6, 9, 12, 15, 18, 20, 22]
        nxt = 0
        for k, ub in enumerate(UB):
            lim = min(22, ub + 4)
            if k >= 2: lim = min(lim, UB[k - 2] + 16 - 1)
            else: lim = min(lim, 16)
            while nxt < lim: ud(nxt); nxt += 1
            a.wait(v=(f"u{ub-1}",)); a.e("s_barrier")
        assert nxt == 22
        a.e("s_branch L_fin")
        a.label("L_pcons"); a.vq = list(q0); a.lq = []
        a.e(f"s_lshr_b32 {sKH}, {sW}, 1"); a.e(f"s_and_b32 {sPH}, {sW}, 1")
        ACC, WR, FB = 64, 112, 16
        a.e("v_bfe_u32 v2, v1, 2, 2"); a.e("v_lshrrev_b32 v3, 5, v1"); a.e("v_lshl_add_u32 v4, v3, 2, v2"); a.e("v_lshlrev_b32 v8, 7, v4")
        a.e("v_lshrrev_b32 v2, 1, v2"); a.e("v_lshl_add_u32 v8, v2, 6, v8")
        a.e("v_bfe_u32 v2, v1, 4, 1"); a.e("v_lshl_add_u32 v8, v2, 5, v8"); a.e("v_and_b32 v2, 3, v1"); a.e("v_lshl_add_u32 v8, v2, 3, v8")
        a.e(f"s_lshl_b32 s54, {sKH}, 12"); a.e("v_add_u32 v8, s54, v8"); a.e("v_xor_b32 v9, 64, v8")
        a.e("v_add_u32 v10, 0x10000, v8"); a.e("v_add_u32 v11, 0x10000, v9")
        a.e(f"s_lshl_b32 s54, {sPH}, 6"); a.e("v_xor_b32 v12, s54, v8"); a.e("v_add_u32 v13, 0x10000, v12"); a.e("v_add_u32 v14, 0x20000, v12")
        a.e(f"s_lshl_b32 s54, {sKH}, 11"); a.e("v_add_u32 v58, s54, v6"); a.e("v_add_u32 v59, 0x10000, v58")
        a.e(f"s_lshl_b32 s54, {sPH}, 12"); a.e("v_add_u32 v60, s54, v58"); a.e("v_add_u32 v61, 0x10000, v60")
        a.e("v_and_b32 v2, 31, v1"); a.e("v_mul_u32_u24 v2, 272, v2"); a.e("v_lshl_add_u32 v54, v3, 4, v2")
        a.e(f"s_mul_i32 s54, {sKH}, 17408"); a.e(f"s_mul_i32 s55, {sPH}, {32*272}"); a.e("s_add_u32 s54, s54, s55"); a.e("v_add_u32 v54, s54, v54")
        def w2read(n, ks, r, tag=None):
            sl = W2SLOT[n]; off = (sl % 8) * 8192 + ks * 2048; va = 12 + sl // 8
            a.e(f"ds_read_b64_tr_b16 v[{r}:{r+1}], v{va} offset:{off}", tag=tag); a.e(f"ds_read_b64_tr_b16 v[{r+2}:{r+3}], v{va} offset:{off+1024}", tag=tag)
        def stage_out():
            for dh in range(2):
                for q in range(4): a.e(f"ds_write_b128 v54, v[{ACC+16*dh+4*q}:{ACC+16*dh+4*q+3}] offset:{FIN + dh*128 + q*32}")
            a.e("s_waitcnt lgkmcnt(0)")
        a.e("s_waitcnt vmcnt(0)"); a.e("s_barrier")
        self.stamp(11)
        for n in range(12):
            for ks in range(2): w2read(n, ks, WR + 8 * n + 4 * ks)
        a.e("s_waitcnt lgkmcnt(0)"); a.e("s_barrier")
        a.e("s_barrier")
        for n in range(12, 18):
            for ks in range(2): w2read(n, ks, WR + 8 * n + 4 * ks)
        a.e("s_waitcnt lgkmcnt(0)"); a.e("s_barrier")
        def word(j):
            k, ks = j >> 1, j & 1
            b = FB + 12 * (j % 3); sl = WOSLOT[k]; so = OSLOT[k]
            a.e(f"ds_read_b128 v[{b}:{b+3}], v{60+so//8} offset:{(so % 8)*8192 + ks*1024}", tag=f"f{j}")
            for dh in range(2):
                off = (sl % 8) * 8192 + ks * 2048; va = 8 + 2 * (sl // 8) + dh; r = b + 4 + 4 * dh
                a.e(f"ds_read_b64_tr_b16 v[{r}:{r+1}], v{va} offset:{off}", tag=f"f{j}"); a.e(f"ds_read_b64_tr_b16 v[{r+2}:{r+3}], v{va} offset:{off+1024}", tag=f"f{j}")
        for lo, hi in ((0, 8), (8, 16)):
            a.e("s_barrier")
            word(lo); word(lo + 1)
            for j in range(lo, hi):
                a.wait(l=(f"f{j}",))
                b = FB + 12 * (j % 3)
                for dh in range(2):
                    c = ACC + 16 * dh
                    a.e(f"v_mfma_f32_32x32x16_bf16 v[{c}:{c+15}], v[{b+4+4*dh}:{b+7+4*dh}], v[{b}:{b+3}], " + ("0" if j == 0 else f"v[{c}:{c+15}]"))
                    if dh == 0 and j + 2 < hi: word(j + 2)
        a.e("s_barrier")
        stage_out()
        a.e("s_barrier")
        s_collect()
        self.stamp(15)
        a.e("s_barrier")
        self.stamp(12)
        def urd(j):
            n, ks = j >> 1, j & 1
            b = FB + 12 * (j % 3); sl = USLOT(n)
            for dh in range(2):
                a.e(f"ds_read_b128 v[{b+4*dh}:{b+4*dh+3}], v{58+sl//8} offset:{(sl % 8)*8192 + dh*4096 + ks*1024}", tag=f"f{j}")
            if n >= 18: w2read(n, ks, b + 8, tag=f"f{j}")
        nrd = 0; ncomp = 0
        def comp(j):
            a.wait(l=(f"f{j}",))
            b = FB + 12 * (j % 3); n = j >> 1
            w = b + 8 if n >= 18 else WR + 4 * j
            for dh in range(2):
                c = ACC + 16 * dh
                a.e(f"v_mfma_f32_32x32x16_bf16 v[{c}:{c+15}], v[{b+4*dh}:{b+4*dh+3}], v[{w}:{w+3}], " + ("0" if j == 0 else f"v[{c}:{c+15}]"))
        for k, ub in enumerate(UB):
            self.stamp(40 + k, fine=True)
            a.e("s_barrier")
            while nrd < 2 * ub:
                urd(nrd); nrd += 1
                if nrd - ncomp >= 3: comp(ncomp); ncomp += 1
        while ncomp < 44: comp(ncomp); ncomp += 1
        self.stamp(13)
        a.e("v_add_u32 v54, 0x4000, v54")
        stage_out()
        a.label("L_fin")
        a.e("v_lshlrev_b32 v52, 16, v52")
        self.unpack(40, 96, 4)
        a.e("s_barrier")
        a.e("v_add_u32 v57, 0x4000, v57")
        fin_read(16)
        for i in range(8): a.e(f"v_add_f32 v{16+i}, v{16+i}, v{24+i}")
        for i in range(8): a.e(f"v_add_f32 v{16+i}, v{16+i}, v52")
        for i in range(8): a.e(f"v_mul_f32 v{24+i}, v53, v{16+i}")
        for i in range(8): a.e(f"v_exp_f32 v{24+i}, v{24+i}")
        for i in range(8): a.e(f"v_mul_f32 v{16+i}, v{16+i}, v{100+i}")
        for i in range(8): a.e(f"v_add_f32 v{24+i}, 1.0, v{24+i}")
        for i in range(8): a.e(f"v_rcp_f32 v{24+i}, v{24+i}")
        for i in range(8): a.e(f"v_fma_f32 v{16+i}, v{16+i}, v{24+i}, v{40+i}")
        self.pack(8, 16, 4)
        a.e(f"buffer_store_dwordx4 v[8:11], v56, {OUT}, s67 offen")
        if PROBE:
            a.e("s_waitcnt vmcnt(0)")
            self.stamp(14)
            lab = a.newlabel("Lpr"); lp = a.newlabel("Lprl")
            a.e(f"s_cmp_lg_u32 s2, {PROBE[0]}"); a.e(f"s_cbranch_scc1 {lab}"); a.e(f"s_cmp_lg_u32 {sW}, 0"); a.e(f"s_cbranch_scc1 {lab}")
            a.e(f"s_sub_u32 s98, s98, {sN0}"); a.e(f"s_mul_i32 s98, s98, {PROBE[2]}"); a.e("s_min_u32 s98, s98, 100000")
            a.label(lp)
            a.e("s_memrealtime s[90:91]"); a.e("s_waitcnt lgkmcnt(0)"); a.e(f"s_sub_u32 s90, s90, {sN0}"); a.e("s_cmp_lt_u32 s90, s98"); a.e(f"s_cbranch_scc1 {lp}")
            a.label(lab)
        if self.stamps:
            a.e("s_waitcnt vmcnt(0)")
            self.stamp(14)
            a.e("v_lshlrev_b32 v2, 2, v0"); a.e("s_lshl_b32 s54, s2, 11"); a.e(f"s_add_u32 s54, s54, {STAMP_OFF}")
            a.e(f"buffer_store_dword v7, v2, {WS}, s54 offen")
    def build(self):
        a = self.a
        a.raw(HDR.rstrip())
        a.raw(f"; @launch grid=(256,1,1) block=(512,1,1) lds={LDS_BYTES}")
        a.raw('.amdgcn_target "amdgcn-amd-amdhsa--gfx950"'); a.raw(".text"); a.raw(f".globl {NAME}_kernel"); a.raw(".p2align 8")
        a.raw(f".type {NAME}_kernel,@function"); a.label(f"{NAME}_kernel")
        self.prologue()
        q0 = list(a.vq)
        a.e(f"s_cmp_lt_u32 {sJ}, 16"); a.e("s_cbranch_scc1 L_roleA")
        self.role_b()
        a.label("L_phase2")
        a.e("s_nop 1")
        self.phase2()
        a.e("s_endpgm")
        a.label("L_roleS"); a.vq = list(q0); a.lq = []
        self.role_s()
        a.e("s_branch L_phase2")
        a.label("L_roleA"); a.vq = list(q0); a.lq = []
        self.role_a()
        a.e("s_branch L_phase2")
        a.label("L_end")
        a.e("s_endpgm")
        a.raw('.section .rodata,"a"'); a.raw(".p2align 6"); a.raw(f".amdhsa_kernel {NAME}_kernel")
        for l in ("next_free_vgpr 256", "next_free_sgpr 102", "accum_offset 256", "group_segment_fixed_size 0", "kernarg_size 96",
                  "user_sgpr_count 2", "user_sgpr_kernarg_segment_ptr 1", "system_sgpr_workgroup_id_x 1", "float_denorm_mode_32 3"):
            a.raw("  .amdhsa_" + l)
        a.raw(".end_amdhsa_kernel")
        return a.render()

if __name__ == "__main__":
    stamps = "--stamps" in sys.argv
    out = [x for x in sys.argv[1:] if not x.startswith("--")]
    g = G(stamps)
    txt = g.build()
    open(out[0] if out else "k.s", "w").write(txt)
    print("lines", txt.count("\n"), "nops", g.a.nops)
```

```python
import sys, math, os, struct
from asmlib import Asm

NAME = "recurrent_scan__linear_kernel_hedgehog__mixer_token_mlp__prompt"
HDR = open("cdna_kernels/" + NAME + ".s.ref").read().split("; Override launch geometry")[0]

HF_OFF, OF_OFF, UF_OFF, KV_OFF, FL_OFF, ST_OFF, STAMP_OFF = 0x200000, 0x400000, 0x600000, 0x880000, 0x820000, 0x840000, 0x900000
KVZ_OFF = KV_OFF
FL_LN, FL_KV, FL_O, FL_U = FL_OFF, FL_OFF + 0x8000, FL_OFF + 0xC000, FL_OFF + 0x10000
WS_SIZE = 0x1000000
UPITCH = 90
LDS_BYTES = 163840
X, WQKV, WPHI, WO, W1, B1, W2, B2, OUT, DBG, WS = [f"s[{i}:{i+3}]" for i in range(4, 48, 4)]
SRD_SIZES = [2097152, 1572864, 16384, 524288, 5636096, 2752, 5636096, 4096, 2097152, 256, WS_SIZE]
SRD_PTR = [64, 66, 68, 70, 74, 76, 78, 80, 82, 84, 86]
sW, sG, sJ = "s48", "s49", "s50"
sN0, sN1, sNON = "s52", "s53", "s[52:53]"
LOG2E = 1.4426950408889634
SPIN_MAX = 20000
SLEEP = int(os.environ.get("SLEEP", "1"))
FINE = int(os.environ.get("FINE", "0"))
KVJ = int(os.environ.get("KVJ", "14"))
TOUCH = int(os.environ.get("TOUCH", "0"))
NT = int(os.environ.get("NT", "0"))
BMAP = int(os.environ.get("BMAP", "24"))
WAITW = int(os.environ.get("WAITW", "0"))
NWS_ = int(os.environ.get("NWS", "9"))
NPS_ = int(os.environ.get("NPS", "6"))
PRE = int(os.environ.get("PRE", "9"))
PROBE = [int(x) for x in os.environ.get("PROBE", "").split(",") if x]
OUTSC = os.environ.get("OUTSC", "")
CODEPF = int(os.environ.get("CODEPF", "1"))
WARM = int(os.environ.get("WARM", "1"))

def f2h(x): return "0x%08x" % struct.unpack("<I", struct.pack("<f", x))[0]

class G:
    def __init__(self, stamps=False):
        self.a = Asm(); self.stamps = stamps
    def stamp(self, idx, fine=False):
        if PROBE and idx == PROBE[1]:
            self.a.e("s_memrealtime s[98:99]"); self.a.e("s_waitcnt lgkmcnt(0)")
        if not self.stamps or (fine and not FINE): return
        a = self.a
        a.e("s_memrealtime s[98:99]"); a.e("s_waitcnt lgkmcnt(0)"); a.e(f"v_writelane_b32 v7, s98, {idx}")
        if os.environ.get("CLK") and idx < 32: a.e("s_memtime s[98:99]"); a.e("s_waitcnt lgkmcnt(0)"); a.e(f"v_writelane_b32 v7, s98, {idx+32}")
    def capture(self, fn):
        a = self.a; out = []
        save = a.e
        a.e = lambda s, tag=None: out.append((s, tag))
        fn()
        a.e = save
        return out
    def unpack(self, dst0, src0, n):
        for i in range(n):
            self.a.e(f"v_lshlrev_b32 v{dst0+2*i}, 16, v{src0+i}")
            self.a.e(f"v_and_b32 v{dst0+2*i+1}, 0xffff0000, v{src0+i}")
    def pack(self, dst0, src0, n):
        for i in range(n):
            self.a.e(f"v_cvt_pk_bf16_f32 v{dst0+i}, v{src0+2*i}, v{src0+2*i+1}")
    def wave0_begin(self):
        a = self.a; lab = a.newlabel("Lw0")
        a.e(f"s_cmp_lg_u32 {sW}, 0"); a.e(f"s_cbranch_scc1 {lab}"); self._tr = a.track; a.track = False
        return lab
    def wave0_end(self, lab):
        self.a.label(lab); self.a.track = self._tr
    def flag_store(self, soff_reg, t=2):
        a = self.a
        lab = self.wave0_begin()
        a.e(f"v_mov_b32 v{t}, {sN0}"); a.e(f"v_mov_b32 v{t+1}, {sN1}"); a.e(f"v_mov_b32 v{t+2}, 0")
        a.e("s_mov_b64 exec, 1")
        a.e(f"buffer_store_dwordx2 v[{t}:{t+1}], v{t+2}, {WS}, {soff_reg} offen sc1")
        a.e("s_mov_b64 exec, -1")
        self.wave0_end(lab)
    def poll(self, vaddr, tmp=8, pre=False, nl=64):
        a = self.a
        tr = a.track; a.track = False
        a.e("s_mov_b32 s96, 0")
        for stage in ((0, 1) if pre else (1,)):
            lp = a.newlabel("Lpoll"); dn = a.newlabel("Lpd")
            a.e("s_mov_b64 exec, 1" if stage == 0 else ("s_mov_b64 exec, -1" if nl == 64 else f"s_mov_b64 exec, {hex((1 << nl) - 1)}"))
            a.label(lp)
            a.e(f"buffer_load_dwordx2 v[{tmp}:{tmp+1}], {vaddr}, {WS}, 0 offen sc1")
            a.e("s_waitcnt vmcnt(0)")
            a.e(f"v_cmp_ne_u64 vcc, {sNON}, v[{tmp}:{tmp+1}]")
            a.e("s_add_u32 s96, s96, 1")
            a.e("s_cmp_eq_u64 vcc, 0"); a.e(f"s_cbranch_scc1 {dn}")
            a.e("s_mov_b64 exec, vcc")
            a.e(f"s_cmp_gt_u32 s96, {SPIN_MAX}"); a.e(f"s_cbranch_scc1 {dn}")
            a.e(f"s_sleep {SLEEP if stage else 2}"); a.e(f"s_branch {lp}")
            a.label(dn)
        a.e("s_mov_b64 exec, -1")
        a.track = tr
    def poll_issue(self, vaddr, tmp, tag):
        self.a.e(f"buffer_load_dwordx2 v[{tmp}:{tmp+1}], {vaddr}, {WS}, 0 offen sc1", tag=tag)
    def poll_check(self, vaddr, tmp, tag):
        a = self.a; ok = a.newlabel("Lok")
        a.wait(v=(tag,))
        a.e(f"v_cmp_ne_u64 vcc, {sNON}, v[{tmp}:{tmp+1}]")
        a.e("s_cmp_eq_u64 vcc, 0"); a.e(f"s_cbranch_scc1 {ok}")
        self.poll(vaddr, tmp=tmp)
        a.label(ok)
    def nonce_issue(self, tmp, z):
        self.a.e(f"v_mov_b32 v{z}, 0")
        self.a.e(f"buffer_load_dwordx2 v[{tmp}:{tmp+1}], v{z}, {DBG}, 0 offen sc1", tag="nonce")
    def nonce_get(self, tmp, z):
        a = self.a
        a.wait(v=("nonce",))
        lp = a.newlabel("Lnp"); dn = a.newlabel("Lnd")
        tr = a.track; a.track = False
        a.e("s_mov_b32 s96, 0")
        a.label(lp)
        a.e(f"v_readfirstlane_b32 {sN0}, v{tmp}"); a.e(f"v_readfirstlane_b32 {sN1}, v{tmp+1}")
        a.e(f"s_xor_b32 s95, {sN0}, {sN1}"); a.e("s_cmp_eq_u32 s95, 0x5bd1e995"); a.e(f"s_cbranch_scc1 {dn}")
        a.e("s_add_u32 s96, s96, 1"); a.e(f"s_cmp_gt_u32 s96, {SPIN_MAX}"); a.e(f"s_cbranch_scc1 {dn}")
        a.e("s_sleep 1")
        a.e(f"buffer_load_dwordx2 v[{tmp}:{tmp+1}], v{z}, {DBG}, 0 offen sc1"); a.e("s_waitcnt vmcnt(0)")
        a.e(f"s_branch {lp}")
        a.label(dn)
        a.track = tr
    def prologue(self):
        a = self.a
        a.e("s_cmp_ge_u32 s2, 256"); a.e("s_cbranch_scc1 L_end")
        a.e("s_load_dwordx16 s[64:79], s[0:1], 0"); a.e("s_load_dwordx8 s[80:87], s[0:1], 64")
        a.e("s_memrealtime s[92:93]")
        a.e("v_and_b32 v1, 63, v0"); a.e("v_lshrrev_b32 v2, 6, v0"); a.e(f"v_readfirstlane_b32 {sW}, v2")
        a.e("v_lshlrev_b32 v6, 4, v1")
        if CODEPF:
            a.e("s_getpc_b64 s[88:89]")
            a.label("L_pc")
            a.e("s_bfe_u32 s54, s2, 0x30003"); a.e("s_lshl_b32 s54, s54, 13")
            a.e("v_lshlrev_b32 v2, 10, v2"); a.e("v_lshl_add_u32 v2, v1, 7, v2"); a.e("v_add_u32 v2, s54, v2")
            a.e("v_min_u32 v2, L_end-L_pc, v2")
            a.e("v_mov_b32 v3, s89"); a.e("v_add_co_u32 v2, vcc, s88, v2"); a.e("v_addc_co_u32 v3, vcc, 0, v3, vcc")
            a.e("s_mov_b64 exec, 0xff")
            a.e("global_load_dword v255, v[2:3], off", tag="cpf")
            a.e("s_mov_b64 exec, -1")
        a.e(f"s_and_b32 {sG}, s2, 7"); a.e(f"s_lshr_b32 {sJ}, s2, 3")
        for i, sz in enumerate(SRD_SIZES):
            a.e(f"s_mov_b32 s{4+4*i+2}, {sz}"); a.e(f"s_mov_b32 s{4+4*i+3}, 0x20000")
        a.e(f"s_lshr_b32 s62, {sG}, 1"); a.e("s_lshl_b32 s62, s62, 5"); a.e(f"s_and_b32 s54, {sJ}, 3"); a.e("s_lshl_b32 s54, s54, 3"); a.e("s_add_u32 s62, s62, s54")
        a.e(f"s_and_b32 s54, {sG}, 1"); a.e("s_lshl_b32 s54, s54, 2"); a.e("s_add_u32 s62, s62, s54"); a.e(f"s_bfe_u32 s54, {sJ}, 0x20002"); a.e("s_add_u32 s62, s62, s54")
        a.e("s_lshl_b32 s54, s62, 4"); a.e(f"s_add_u32 s54, s54, {sW}"); a.e("s_lshl_b32 s54, s54, 10"); a.e("s_add_u32 s55, s54, 8192")
        lx = a.newlabel("Lx")
        a.e(f"s_cmp_ge_u32 {sJ}, 16")
        a.e("s_waitcnt lgkmcnt(0)")
        a.e("s_mov_b64 s[4:5], s[64:65]")
        a.e(f"s_cbranch_scc1 {lx}")
        a.track = False
        a.e(f"buffer_load_dwordx4 v[128:131], v6, {X}, s54 offen"); a.e(f"buffer_load_dwordx4 v[132:135], v6, {X}, s55 offen")
        a.track = True
        a.label(lx)
        if self.stamps:
            a.e("v_mov_b32 v7, 0"); a.e("v_writelane_b32 v7, s92, 0")
        a.e("s_mov_b64 s[40:41], s[84:85]")
        lab = a.newlabel("Lnon")
        a.e(f"s_or_b32 s54, s2, {sW}"); a.e("s_cmp_lg_u32 s54, 0"); a.e(f"s_cbranch_scc1 {lab}")
        a.track = False
        a.e("s_xor_b32 s93, s92, 0x5bd1e995")
        a.e("v_mov_b32 v2, s92"); a.e("v_mov_b32 v3, s93"); a.e("v_mov_b32 v4, 0")
        a.e("s_mov_b64 exec, 1")
        a.e(f"buffer_store_dwordx2 v[2:3], v4, {DBG}, 0 offen sc1")
        a.e("s_mov_b64 exec, -1")
        a.track = True
        a.label(lab)
        for i, p in enumerate(SRD_PTR):
            if i not in (0, 9): a.e(f"s_mov_b64 s[{4+4*i}:{5+4*i}], s[{p}:{p+1}]")
    def ln_block(self, pre):
        a = self.a
        LH = 131072
        R = (128, 132)
        a.e(f"s_mul_i32 s54, {sW}, 1088"); a.e(f"s_add_u32 s54, s54, {LH}"); a.e("v_add_u32 v136, s54, v6")
        a.e("v_bfe_u32 v137, v1, 2, 2"); a.e("v_lshrrev_b32 v138, 5, v1"); a.e("v_lshl_add_u32 v137, v138, 3, v137"); a.e("v_mul_u32_u24 v137, 1088, v137")
        a.e("v_bfe_u32 v139, v1, 4, 1"); a.e("v_lshl_add_u32 v137, v139, 5, v137"); a.e("v_and_b32 v138, 3, v1"); a.e("v_lshl_add_u32 v137, v138, 3, v137")
        a.e(f"s_lshl_b32 s54, {sW}, 7"); a.e(f"s_add_u32 s54, s54, {LH}"); a.e("v_add_u32 v137, s54, v137")
        a.e("v_mov_b32 v139, v6")
        a.e("s_lshl_b32 s88, s62, 10"); a.e(f"s_lshl_b32 s54, {sW}, 18"); a.e("s_add_u32 s88, s88, s54"); a.e(f"s_add_u32 s88, s88, {HF_OFF}")
        a.e("s_add_u32 s87, s88, 0x20000")
        a.e("s_lshl_b32 s86, s62, 7"); a.e(f"s_lshl_b32 s54, {sW}, 3"); a.e("s_add_u32 s86, s86, s54"); a.e(f"s_add_u32 s86, s86, {ST_OFF}")
        a.e(f"v_mov_b32 v140, {f2h(1e-5)}")
        pre()
        a.wait(v=("xrow",))
        self.stamp(1)
        self.nonce_issue(22, 4)
        T = (144, 152); S1 = (160, 162); S2 = (161, 163)
        for r in range(2): self.unpack(T[r], R[r], 4)
        for r in range(2): a.e(f"v_readfirstlane_b32 s{90+r}, v{T[r]}")
        for r in range(2): a.e(f"v_mov_b32 v{141+r}, s{90+r}")
        for i in range(8):
            for r in range(2): a.e(f"v_sub_f32 v{T[r]+i}, v{T[r]+i}, v{141+r}")
        for r in range(2):
            a.e(f"v_add_f32 v{S1[r]}, v{T[r]}, v{T[r]+1}"); a.e(f"v_mul_f32 v{S2[r]}, v{T[r]}, v{T[r]}")
        for i in range(1, 8):
            for r in range(2):
                if i >= 2: a.e(f"v_add_f32 v{S1[r]}, v{S1[r]}, v{T[r]+i}")
                a.e(f"v_fmac_f32 v{S2[r]}, v{T[r]+i}, v{T[r]+i}")
        a.e("v_permlane16_swap_b32 v160, v161"); a.e("v_permlane16_swap_b32 v162, v163")
        a.e("v_add_f32 v160, v160, v161"); a.e("v_add_f32 v162, v162, v163")
        a.e("v_permlane32_swap_b32 v160, v162"); a.e("v_add_f32 v160, v160, v162")
        for ctl in ("quad_perm:[1,0,3,2]", "quad_perm:[2,3,0,1]", "row_half_mirror", "row_mirror"):
            a.e(f"v_add_f32_dpp v160, v160, v160 {ctl} row_mask:0xf bank_mask:0xf")
        a.e("v_mul_f32 v160, 0x3b000000, v160")
        for q in range(4): a.e(f"v_readlane_b32 s{92+q}, v160, {16*q}")
        for r in range(2):
            b = 160 + 5 * r
            a.e(f"v_mov_b32 v{b}, s{92+2*r}")
            a.e(f"v_fma_f32 v{b+1}, -v{b}, v{b}, s{93+2*r}"); a.e(f"v_max_f32 v{b+1}, 0, v{b+1}")
            a.e(f"v_add_f32 v{b+2}, v140, v{b+1}"); a.e(f"v_fmac_f32 v{b+1}, v{b+2}, v140")
        for r in range(2):
            b = 160 + 5 * r
            a.e(f"v_rsq_f32 v{b+1}, v{b+1}")
        for r in range(2):
            b = 160 + 5 * r
            a.e(f"v_rsq_f32 v{129+2*r}, v{b+2}"); a.e(f"v_add_f32 v{128+2*r}, v{141+r}, v{b}"); a.e(f"v_mul_f32 v{b}, v{b}, v{b+1}")
        for r in range(2):
            b = 160 + 5 * r
            for i in range(8): a.e(f"v_fma_f32 v{T[r]+i}, v{T[r]+i}, v{b+1}, -v{b}")
            self.pack(T[r], T[r], 4)
            a.e(f"ds_write_b128 v136, v[{T[r]}:{T[r]+3}] offset:{r*8*1088}")
        a.e("s_mov_b64 exec, 1")
        for r in range(2): a.e(f"buffer_store_dwordx2 v[{128+2*r}:{129+2*r}], v4, {WS}, s86 offen offset:{64*r} sc1", tag="lnst")
        a.e("s_mov_b64 exec, -1")
        a.e("s_waitcnt lgkmcnt(0)"); a.e("s_barrier")
        for n in range(2):
            a.e(f"ds_read_b64_tr_b16 v[{144+4*n}:{145+4*n}], v137 offset:{64*n}"); a.e(f"ds_read_b64_tr_b16 v[{146+4*n}:{147+4*n}], v137 offset:{64*n+4*1088}")
        a.e("s_waitcnt lgkmcnt(2)")
        a.e(f"buffer_store_dwordx4 v[144:147], v139, {WS}, s88 offen sc1", tag="lnst")
        a.e("s_waitcnt lgkmcnt(0)")
        a.e(f"buffer_store_dwordx4 v[148:151], v139, {WS}, s87 offen sc1", tag="lnst")
        self.stamp(2)
    def feat(self, P, Gm, t, vsc, norm=True):
        a = self.a
        M0, M1, S0, S1 = t, t + 1, t + 2, t + 3
        a.e(f"v_max3_f32 v{M0}, v{P}, v{P+1}, v{P+2}"); a.e(f"v_min3_f32 v{M1}, v{P}, v{P+1}, v{P+2}")
        a.e(f"v_max3_f32 v{M0}, v{M0}, v{P+3}, v{P+4}"); a.e(f"v_min3_f32 v{M1}, v{M1}, v{P+3}, v{P+4}")
        a.e(f"v_max3_f32 v{M0}, v{M0}, v{P+5}, v{P+6}"); a.e(f"v_min3_f32 v{M1}, v{M1}, v{P+5}, v{P+6}")
        a.e(f"v_max_f32 v{M0}, v{M0}, v{P+7}"); a.e(f"v_max_f32 v{M1}, -v{M1}, -v{P+7}")
        a.e(f"v_permlane32_swap_b32 v{M0}, v{M1}"); a.e(f"v_max_f32 v{M0}, v{M0}, v{M1}")
        a.e(f"v_mul_f32 v{M0}, v{vsc}, v{M0}")
        a.e(f"v_mov_b32 v{M1}, v{M0}"); a.e(f"v_permlane32_swap_b32 v{M0}, v{M1}")
        for i in range(8):
            a.e(f"v_fma_f32 v{Gm+i}, v{P+i}, v{vsc}, -v{M0}"); a.e(f"v_fma_f32 v{P+i}, -v{P+i}, v{vsc}, -v{M1}")
        for i in range(8):
            a.e(f"v_exp_f32 v{Gm+i}, v{Gm+i}"); a.e(f"v_exp_f32 v{P+i}, v{P+i}")
        a.e(f"v_add_f32 v{S0}, v{Gm}, v{Gm+1}"); a.e(f"v_add_f32 v{S1}, v{P}, v{P+1}")
        for i in range(2, 8):
            a.e(f"v_add_f32 v{S0}, v{S0}, v{Gm+i}"); a.e(f"v_add_f32 v{S1}, v{S1}, v{P+i}")
        a.e(f"v_permlane32_swap_b32 v{S0}, v{S1}"); a.e(f"v_add_f32 v{S0}, v{S0}, v{S1}")
        a.e(f"v_rcp_f32 v{S0}, v{S0}")
        a.e(f"v_mov_b32 v{S1}, v{S0}"); a.e(f"v_permlane32_swap_b32 v{S0}, v{S1}")
        for i in range(8):
            a.e(f"v_mul_f32 v{Gm+i}, v{Gm+i}, v{S0}"); a.e(f"v_mul_f32 v{P+i}, v{P+i}, v{S1}")
    def lds_sync(self, vaddr, target, t):
        a = self.a
        lp = a.newlabel("Lls"); dn = a.newlabel("Lld")
        a.e(f"v_mov_b32 v{t}, 1"); a.e("s_mov_b64 exec, 1"); a.e(f"ds_add_u32 {vaddr}, v{t}"); a.e("s_mov_b64 exec, -1")
        a.e("s_mov_b32 s96, 0")
        a.label(lp)
        a.e(f"ds_read_b32 v{t}, {vaddr}"); a.e("s_waitcnt lgkmcnt(0)"); a.e(f"v_readfirstlane_b32 s95, v{t}")
        a.e(f"s_cmp_ge_u32 s95, {target}"); a.e(f"s_cbranch_scc1 {dn}")
        a.e("s_add_u32 s96, s96, 1"); a.e("s_cmp_lt_u32 s96, 1000000"); a.e(f"s_cbranch_scc1 {lp}")
        a.label(dn)
    NREG = 18
    W2SLOT = {0: 12, 1: 13, 2: 14, 3: 15, 4: 2, 5: 3, 6: 0, 7: 1, 18: 16, 19: 17, 20: 18, 21: 19,
              8: 4, 9: 5, 10: 6, 11: 7, 12: 8, 13: 9, 14: 10, 15: 11, 16: 12, 17: 13}
    WOSLOT = {k: 4 + k for k in range(8)}
    URING = [14, 15, 2, 3, 0, 1, 4, 5, 6, 7, 8, 9, 10, 11, 12, 13]
    EARLY = [("wo", k) for k in range(8)] + [("w2", n) for n in range(6)]
    def p2_slot(self, it): return (self.WOSLOT if it[0] == "wo" else self.W2SLOT)[it[1]]
    def p2_ids(self):
        a = self.a
        a.e(f"s_and_b32 s100, {sG}, 1"); a.e("s_lshl_b32 s100, s100, 2"); a.e(f"s_lshr_b32 s54, {sJ}, 3"); a.e("s_add_u32 s100, s100, s54")
        a.e(f"s_lshr_b32 s101, {sG}, 1"); a.e("s_lshl_b32 s101, s101, 3"); a.e(f"s_and_b32 s55, {sJ}, 7"); a.e("s_add_u32 s101, s101, s55")
        a.e("s_lshl_b32 s97, s54, 1"); a.e("s_add_u32 s97, s97, s55")
        a.e(f"s_and_b32 s3, {sG}, 1"); a.e("s_add_u32 s54, s97, s3"); a.e("s_and_b32 s54, s54, 7")
        a.e("s_mul_i32 s3, s54, 11"); a.e("s_lshr_b32 s3, s3, 2")
    def p2_voff(self, nw):
        a = self.a
        a.e("v_bfe_u32 v2, v1, 4, 1"); a.e("v_lshlrev_b32 v2, 2, v2"); a.e("v_and_b32 v3, 7, v1"); a.e("v_xor_b32 v2, v2, v3"); a.e("v_lshlrev_b32 v2, 4, v2")
        a.e("v_lshrrev_b32 v3, 3, v1")
        if nw == 8: a.e(f"s_mov_b32 s68, {sW}")
        else: a.e(f"s_and_b32 s68, {sW}, 3"); a.e("s_lshl_b32 s68, s68, 1")
        a.e("s_lshl_b32 s69, s68, 10")
        a.e("v_lshl_add_u32 v60, v3, 12, v2"); a.e("s_lshl_b32 s54, s68, 15"); a.e("s_lshl_b32 s55, s101, 7"); a.e("s_add_u32 s54, s54, s55")
        a.e("v_add_u32 v60, s54, v60")
        a.e("v_lshl_add_u32 v62, v3, 10, v2"); a.e("s_lshl_b32 s54, s68, 13"); a.e("s_lshl_b32 s55, s100, 7"); a.e("s_add_u32 s54, s54, s55")
        a.e("v_add_u32 v62, s54, v62")
        if nw == 4: a.e("v_add_u32 v61, 0x8000, v60"); a.e("v_add_u32 v63, 0x2000, v62")
    def p2_rot(self, dst, n):
        a = self.a
        a.e(f"s_add_u32 {dst}, s3, {n}"); a.e(f"s_cmp_ge_u32 {dst}, 22"); a.e("s_cselect_b32 s54, 22, 0"); a.e(f"s_sub_u32 {dst}, {dst}, s54")
    def p2_w(self, it, ni):
        a = self.a; kind, n = it
        if kind == "w2": self.p2_rot("s68", n); a.e("s_lshl_b32 s68, s68, 18")
        else: a.e(f"s_add_u32 s68, s97, {n}"); a.e("s_and_b32 s68, s68, 7"); a.e("s_lshl_b32 s68, s68, 16")
        for i in range(ni):
            a.e(f"s_add_u32 m0, s69, {self.p2_slot(it)*8192 + i*1024}")
            a.e(f"buffer_load_dwordx4 v{(60 if kind == 'w2' else 62)+i}, {W2 if kind == 'w2' else WO}, s68 offen lds", tag=f"{kind}_{n}")
    def p2_setup_common(self):
        a = self.a
        a.e("v_lshrrev_b32 v2, 3, v0"); a.e("v_and_b32 v3, 7, v0"); a.e("v_lshlrev_b32 v56, 10, v2"); a.e("v_lshl_add_u32 v56, v3, 4, v56")
        a.e("s_lshl_b32 s94, s101, 16"); a.e("s_lshl_b32 s54, s100, 7"); a.e("s_add_u32 s94, s94, s54")
        a.e(f"buffer_load_dwordx4 v[36:39], v56, {X}, s94 offen", tag="xt")
        a.e("v_mul_u32_u24 v57, 272, v2"); a.e("v_lshl_add_u32 v57, v3, 5, v57")
        a.e("v_lshlrev_b32 v2, 1, v2"); a.e("s_lshl_b32 s54, s101, 7")
        a.e(f"buffer_load_ushort v52, v2, {B2}, s54 offen", tag="xt")
        a.e(f"v_mov_b32 v53, {f2h(-LOG2E)}")
    def p2_setup_loader(self):
        a = self.a
        self.p2_setup_common()
        self.p2_voff(4)
        a.e("v_and_b32 v3, 7, v1"); a.e("s_lshr_b32 s54, s101, 1"); a.e("s_lshl_b32 s54, s54, 3"); a.e("v_add_u32 v3, s54, v3"); a.e("v_lshlrev_b32 v3, 7, v3"); a.e(f"v_add_u32 v59, {FL_O}, v3")
        a.e("v_min_u32 v2, 14, v1"); a.e("s_mul_i32 s54, s100, 15"); a.e("v_add_u32 v2, s54, v2"); a.e("v_lshlrev_b32 v2, 7, v2"); a.e(f"v_add_u32 v58, {FL_U}, v2")
        a.e(f"s_bfe_u32 s55, {sW}, 0x10001"); a.e(f"s_and_b32 s68, {sW}, 1"); a.e("s_lshl_b32 s68, s68, 11")
        a.e("s_lshl_b32 s93, s100, 1"); a.e("s_add_u32 s93, s93, s55"); a.e(f"s_mul_i32 s93, s93, {UPITCH*1024}"); a.e("s_add_u32 s93, s93, s68"); a.e(f"s_add_u32 s93, s93, {UF_OFF}")
        a.e(f"s_and_b32 s68, {sW}, 1"); a.e("s_lshl_b32 s92, s101, 1"); a.e("s_add_u32 s92, s92, s68"); a.e("s_lshl_b32 s92, s92, 15"); a.e("s_lshl_b32 s54, s55, 11"); a.e("s_add_u32 s92, s92, s54"); a.e(f"s_add_u32 s92, s92, {OF_OFF}")
        self.p2_waddr("s55", "s68")
        a.e("s_lshl_b32 s70, s3, 12"); a.e("s_add_u32 s70, s70, s93"); a.e(f"s_add_u32 s68, s93, {22*4096}")
        for n in range(1, 22):
            a.e(f"s_add_u32 s{70+n}, s{69+n}, 4096"); a.e(f"s_cmp_ge_u32 s{70+n}, s68"); a.e(f"s_cselect_b32 s{70+n}, s93, s{70+n}")
    def p2_waddr(self, skh, sph):
        a = self.a
        a.e("v_bfe_u32 v2, v1, 2, 2"); a.e("v_lshrrev_b32 v3, 5, v1"); a.e("v_lshl_add_u32 v28, v3, 2, v2"); a.e("v_lshlrev_b32 v28, 7, v28")
        a.e("v_lshrrev_b32 v2, 1, v2"); a.e("v_lshl_add_u32 v28, v2, 6, v28")
        a.e("v_bfe_u32 v2, v1, 4, 1"); a.e("v_lshl_add_u32 v28, v2, 5, v28"); a.e("v_and_b32 v2, 3, v1"); a.e("v_lshl_add_u32 v28, v2, 3, v28")
        a.e(f"s_lshl_b32 s54, {skh}, 12"); a.e("v_add_u32 v28, s54, v28"); a.e("v_xor_b32 v29, 64, v28")
        a.e("v_add_u32 v30, 0x10000, v28"); a.e("v_add_u32 v31, 0x10000, v29")
        a.e("v_and_b32 v2, 31, v1"); a.e("v_mul_u32_u24 v2, 272, v2"); a.e("v_lshl_add_u32 v54, v3, 4, v2")
        a.e(f"s_mul_i32 s54, {skh}, 17408"); a.e("v_add_u32 v54, s54, v54"); a.e(f"s_mul_i32 s54, {sph}, {32*272}"); a.e("v_add_u32 v54, s54, v54")
    def p2_setup_consumer(self):
        a = self.a
        self.p2_setup_common()
        a.e(f"s_lshr_b32 s68, {sW}, 1"); a.e(f"s_and_b32 s69, {sW}, 1")
        self.p2_waddr("s68", "s69")
        a.e("s_lshl_b32 s54, s69, 6"); a.e("v_xor_b32 v32, s54, v28"); a.e("v_add_u32 v33, 0x10000, v32"); a.e("v_add_u32 v34, 0x20000, v32")
        a.e("s_lshl_b32 s54, s68, 11"); a.e("v_add_u32 v58, s54, v6"); a.e("v_add_u32 v59, 0x10000, v58")
    def p2_enter_sym(self):
        a = self.a
        lab = a.newlabel("Lpe")
        a.e(f"s_cmp_lt_u32 {sW}, 4"); a.e(f"s_cbranch_scc1 {lab}")
        self.p2_setup_loader(); a.e("s_branch L_pload")
        a.label(lab)
        self.p2_setup_consumer(); a.e("s_branch L_pcons")
    def role_a(self):
        a = self.a
        sTB, sHG, sROT, sTG, sHP = "s56", "s57", "s51", "s58", "s59"
        XR, AK, AV, AQ, WF = 128, 64, 80, 96, 112
        CS = 149504
        a.vq = a.vq + ["xrow", "xrow"]
        a.e(f"s_lshr_b32 {sTB}, s62, 3"); a.e(f"s_and_b32 {sHG}, s62, 7")
        a.e(f"s_add_u32 {sROT}, {sTB}, {sHG}"); a.e(f"s_lshl_b32 {sROT}, {sROT}, 1"); a.e(f"s_and_b32 s54, {sG}, 1"); a.e(f"s_add_u32 {sROT}, {sROT}, s54")
        a.e(f"s_and_b32 {sTG}, {sW}, 3"); a.e(f"s_lshr_b32 {sHP}, {sW}, 2")
        a.e("v_lshrrev_b32 v2, 3, v1"); a.e("v_and_b32 v3, 7, v1"); a.e("v_lshrrev_b32 v5, 4, v1"); a.e("v_xor_b32 v5, v5, v3")
        a.e("v_lshlrev_b32 v8, 10, v2"); a.e("v_lshl_add_u32 v8, v5, 4, v8")
        a.e(f"s_lshl_b32 s54, {sTB}, 17"); a.e(f"s_lshl_b32 s55, {sW}, 14"); a.e("s_add_u32 s54, s54, s55")
        a.e("v_add_u32 v8, s54, v8"); a.e("v_xor_b32 v9, 64, v8"); a.e("v_add_u32 v9, 0x2000, v9")
        a.e("v_mul_u32_u24 v5, 3072, v2"); a.e("v_bfe_u32 v2, v1, 4, 1"); a.e("v_lshlrev_b32 v2, 2, v2"); a.e("v_xor_b32 v2, v2, v3")
        a.e("v_lshl_add_u32 v5, v2, 4, v5"); a.e(f"s_lshl_b32 s55, {sHG}, 7"); a.e(f"s_mul_i32 s54, {sW}, 24576"); a.e("s_add_u32 s55, s55, s54"); a.e("v_add_u32 v5, s55, v5")
        a.e("v_add_u32 v10, 1024, v5"); a.e("v_add_u32 v11, 2048, v5")
        a.e(f"s_lshl_b32 s64, {sW}, 11"); a.e(f"s_lshl_b32 s67, {sW}, 10")
        def ctab(c):
            a.e(f"s_add_u32 s65, {sROT}, {c}"); a.e("s_and_b32 s65, s65, 7"); a.e(f"s_lshl_b32 s{70+c}, s65, 7"); a.e(f"s_mul_i32 s{78+c}, s65, {64*3072}")
        ctab(0); ctab(1)
        def dma(c, i):
            if c < 8:
                if i < 2:
                    a.e(f"s_add_u32 m0, s64, {(c % 4)*16384 + i*1024}")
                    a.e(f"buffer_load_dwordx4 v{8+i}, {X}, s{70+c} offen lds", tag=f"d{c}")
                else:
                    a.e(f"s_add_u32 m0, s67, {65536 + (c % 4)*16384 + (i-2)*8192}")
                    a.e(f"buffer_load_dwordx4 v{8+i}, {WQKV}, s{78+c} offen lds", tag=f"d{c}")
            else:
                sl = c - 8
                qc = (i >> 1) * 4 + 2 * sl + (i & 1)
                a.e(f"s_add_u32 m0, s67, {qaddr(qc)}")
                a.e(f"buffer_load_dwordx4 v5, {WQKV}, s{78+qc} offen lds", tag=f"d{c}")
        def qaddr(qc): return (qc >> 2) * 65536 + (qc & 3) * 8192
        def dma4(c):
            for i in (0, 2, 1, 3): dma(c, i)
        def pre():
            a.e("s_lshl_b32 s61, s62, 7"); a.e(f"s_add_u32 s63, s61, {FL_KV}"); a.e(f"s_add_u32 s61, s61, {FL_O}")
            a.e("v_lshrrev_b32 v3, 5, v1")
            a.e("v_bfe_u32 v2, v1, 4, 1"); a.e("v_lshlrev_b32 v2, 9, v2"); a.e("v_and_b32 v4, 15, v1"); a.e("v_lshl_add_u32 v2, v4, 1, v2")
            a.e("v_lshl_add_u32 v2, v3, 7, v2"); a.e(f"s_lshl_b32 s54, {sHG}, 11"); a.e(f"s_lshl_b32 s55, {sHP}, 10"); a.e("s_add_u32 s54, s54, s55")
            for jj in range(8):
                a.e(f"buffer_load_ushort v{96+jj}, v2, {WPHI}, s54 offen offset:{((jj>>2)*8 + (jj&3))*32}", tag="wphi")
            a.e("s_mov_b32 s89, 0x3f803f80")
            a.e("v_bfe_u32 v2, v1, 2, 2"); a.e("v_lshl_add_u32 v4, v3, 3, v2"); a.e("v_lshlrev_b32 v16, 7, v4")
            a.e("v_lshrrev_b32 v2, 1, v2"); a.e(f"v_xor_b32 v2, {sHP}, v2"); a.e("v_lshl_add_u32 v16, v2, 6, v16")
            a.e("v_bfe_u32 v2, v1, 4, 1"); a.e("v_lshl_add_u32 v16, v2, 5, v16"); a.e("v_and_b32 v2, 3, v1"); a.e("v_lshl_add_u32 v16, v2, 3, v16")
            a.e("v_add_u32 v17, 0x10000, v16")
            a.e(f"s_lshl_b32 s54, {sTG}, 11"); a.e("v_add_u32 v18, s54, v16"); a.e("v_add_u32 v19, s54, v17")
            a.e("v_and_b32 v2, 31, v1"); a.e("v_lshlrev_b32 v2, 7, v2"); a.e(f"s_lshl_b32 s54, {sTG}, 12"); a.e("v_add_u32 v2, s54, v2")
            a.e("v_bfe_u32 v4, v1, 1, 3"); a.e("v_xor_b32 v4, v4, v3")
            for ks in range(4):
                a.e(f"v_xor_b32 v20, {2*ks}, v4"); a.e(f"v_lshl_add_u32 v{12+ks}, v20, 4, v2")
            for i in range(3): a.e(f"v_mov_b32 v{28+i}, 0")
            a.e(f"v_mov_b32 v2, {LDS_BYTES-4}"); a.e("ds_write_b32 v2, v28")
            a.e("v_and_b32 v2, 31, v1"); a.e("v_lshlrev_b32 v2, 5, v2"); a.e(f"s_lshl_b32 s54, {sHP}, 10"); a.e(f"s_add_u32 s54, s54, {CS}"); a.e("v_add_u32 v2, s54, v2")
            a.e("v_lshl_add_u32 v21, v3, 4, v2"); a.e("v_lshl_add_u32 v20, v3, 2, v2"); a.e(f"s_lshl_b32 s54, {sTG}, 3"); a.e("v_add_u32 v20, s54, v20")
            a.e("v_and_b32 v2, 1, v1"); a.e(f"s_lshl_b32 s54, {sTB}, 3"); a.e(f"s_lshl_b32 s55, {sTG}, 1"); a.e("s_add_u32 s54, s54, s55"); a.e("v_add_u32 v2, s54, v2")
            a.e("s_lshl_b32 s60, s54, 7"); a.e(f"s_add_u32 s60, s60, {ST_OFF}")
            a.e(f"s_add_u32 s54, {sHG}, 128"); a.e("v_mov_b32 v3, s54"); a.e("v_cmp_gt_u32 vcc, 2, v1"); a.e("v_cndmask_b32 v2, v3, v2, vcc")
            a.e("v_lshlrev_b32 v31, 7, v2"); a.e(f"v_add_u32 v31, {FL_LN}, v31")
            self.p2_ids()
        self.ln_block(lambda: None)
        dma4(0)
        self.nonce_get(22, 4)
        a.e("s_lshl_b32 s86, s62, 7"); a.e(f"s_add_u32 s86, s86, {FL_LN}")
        for c in range(2, 8): ctab(c)
        pre()
        a.wait(v=("lnst",)); a.e("s_barrier")
        self.flag_store("s86"); self.stamp(3)
        dma4(1); dma4(2)
        self.stamp(4)
        def fb(j, m): return (112 if m == 0 else 40) + 4 * (j % 4)
        def kvread(j):
            c, ks = j >> 2, j & 3
            r = XR + 4 * j
            a.e(f"ds_read_b128 v[{r}:{r+3}], v{12+ks} offset:{(c % 4)*16384}", tag=f"f{j}")
            for m in range(2):
                r = fb(j, m); off = (c % 4) * 16384 + m * 8192 + ks * 2048
                a.e(f"ds_read_b64_tr_b16 v[{r}:{r+1}], v17 offset:{off}", tag=f"f{j}"); a.e(f"ds_read_b64_tr_b16 v[{r+2}:{r+3}], v17 offset:{off+512}", tag=f"f{j}")
        def csread(vaddr, off, r):
            a.e(f"ds_read_b64_tr_b16 v[{r}:{r+1}], v{vaddr} offset:{off}", tag="cs"); a.e(f"ds_read_b64_tr_b16 v[{r+2}:{r+3}], v{vaddr} offset:{off+512}", tag="cs")
        def csacc(reg, r):
            for i in range(4): a.e(f"v_dot2_f32_bf16 v{reg}, v{r+i}, s89, v{reg}")
        pend = []
        for j in range(32):
            c, ks = j >> 2, j & 3
            if ks == 0:
                self.stamp(16 + c, fine=True)
                a.wait(v=(f"d{c}", f"d{c+1}") if c < 7 else ("d7",))
                a.e("s_barrier")
                if c == 0: kvread(0); kvread(1)
                if c + 3 < 10 and (c + 3 < 8 or c >= 5): pend = [(c + 3, i) for i in (0, 2, 1, 3)]
                csread(19, (c % 4) * 16384, 32); csread(19, (c % 4) * 16384 + 8192, 36)
                if c == 1:
                    a.wait(v=("wphi",))
                    for i in range(4): a.e(f"v_lshl_or_b32 v{24+i}, v{97+2*i}, 16, v{96+2*i}")
                if c == 5: self.poll_issue("v31", 22, "pf")
                if c == 6:
                    self.poll_check("v31", 22, "pf")
                    a.e("v_and_b32 v2, 31, v1"); a.e("v_lshlrev_b32 v2, 3, v2")
                    a.e(f"buffer_load_dwordx2 v[22:23], v2, {WS}, s60 offen sc1", tag="stat")
            if j + 2 < 32: kvread(j + 2)
            a.wait(l=(f"f{j}",))
            for m in range(2):
                acc = (AK, AV)[m]; r = fb(j, m)
                a.e(f"v_mfma_f32_32x32x16_bf16 v[{acc}:{acc+15}], v[{r}:{r+3}], v[{XR+4*j}:{XR+4*j+3}], " + ("0" if j == 0 else f"v[{acc}:{acc+15}]"))
                if m == 0 and pend: dma(*pend.pop(0))
            if ks == 2: a.wait(l=("cs",)); csacc(28, 32); csacc(29, 36)
        self.stamp(5)
        a.e("ds_write_b32 v20, v28"); a.e("ds_write_b32 v20, v29 offset:2048")
        PKB, VB = 32768, 98304
        a.e("v_and_b32 v3, 31, v1"); a.e("v_lshlrev_b32 v3, 6, v3"); a.e(f"s_lshl_b32 s54, {sTG}, 11"); a.e("v_add_u32 v3, s54, v3")
        a.e("v_bfe_u32 v4, v1, 1, 3"); a.e("v_lshrrev_b32 v2, 5, v1"); a.e("v_xor_b32 v4, v4, v2")
        a.e(f"s_lshl_b32 s54, {sHP}, 14"); a.e(f"s_add_u32 s54, s54, {PKB}"); a.e(f"s_lshl_b32 s55, {sHP}, 13"); a.e(f"s_add_u32 s55, s55, {VB}")
        for q in range(4):
            a.e(f"v_xor_b32 v{12+q}, {2*q}, v4"); a.e(f"v_lshl_add_u32 v{12+q}, v{12+q}, 3, v3")
            a.e(f"v_add_u32 v{8+q}, s55, v{12+q}"); a.e(f"v_add_u32 v{12+q}, s54, v{12+q}")
        def correct(items, t):
            for n, (ci, acc) in enumerate(items): a.e(f"ds_read_b128 v[{t+8+8*n}:{t+11+8*n}], v21 offset:{ci*2048}")
            a.e("s_waitcnt lgkmcnt(0)")
            for n, (ci, acc) in enumerate(items):
                c = t + 8 + 8 * n; b = t + 4 + 8 * n
                a.e(f"v_add_f32 v{c}, v{c}, v{c+1}"); a.e(f"v_add_f32 v{c+2}, v{c+2}, v{c+3}"); a.e(f"v_add_f32 v{c}, v{c}, v{c+2}")
                a.e(f"v_cvt_pk_bf16_f32 v{b+2}, v{c}, v{c}"); a.e(f"v_and_b32 v{b+2}, 0xffff0000, v{b+2}")
                a.e(f"v_sub_f32 v{c}, v{c}, v{b+2}"); a.e(f"v_cvt_pk_bf16_f32 v{b}, v{b+2}, v{c}")
                a.e(f"v_and_b32 v{b+3}, 0xffff0000, v{b}"); a.e(f"v_sub_f32 v{c}, v{c}, v{b+3}"); a.e(f"v_cvt_pk_bf16_f32 v{b+1}, v{b+2}, v{c}")
                a.e(f"v_mfma_f32_32x32x16_bf16 v[{acc}:{acc+15}], v[{b}:{b+3}], v[56:59], v[{acc}:{acc+15}]")
        a.wait(v=("stat",))
        self.stamp(24, fine=True)
        a.e("v_sub_f32 v56, 0, v22"); a.e("v_cvt_pk_bf16_f32 v56, v56, v56"); a.e("v_and_b32 v57, 0xffff0000, v56")
        a.e("v_add_f32 v58, v22, v57"); a.e("v_sub_f32 v58, 0, v58"); a.e("v_cvt_pk_bf16_f32 v57, v58, v57")
        a.e("v_mov_b32 v58, 0"); a.e("v_mov_b32 v59, 0")
        a.e(f"v_mul_f32 v22, {f2h(LOG2E)}, v23")
        a.e("s_waitcnt lgkmcnt(0)"); a.e("s_barrier")
        self.stamp(25, fine=True)
        correct([(0, AK), (1, AV)], 32)
        self.stamp(26, fine=True)
        self.pack(AK, AK, 8)
        def feats(src, store):
            a.e(f"v_mfma_f32_32x32x16_bf16 v[96:111], v[24:27], v[{src}:{src+3}], 0")
            a.e(f"v_mfma_f32_32x32x16_bf16 v[112:127], v[24:27], v[{src+4}:{src+7}], 0")
            l0 = self.capture(lambda: (self.feat(96, 104, 32, 22), store(0, 96, 104)))
            l1 = self.capture(lambda: (self.feat(120, 112, 36, 22), store(1, 120, 112)))
            return [x for p in zip(l0, l1) for x in p]
        def store_k(hh, P, Gm):
            self.pack(Gm, Gm, 4); self.pack(Gm + 4, P, 4)
            for q in range(4): a.e(f"ds_write_b64 v{12+q}, v[{Gm+2*q}:{Gm+2*q+1}] offset:{hh*8192}")
        a.e("v_lshrrev_b32 v2, 3, v1"); a.e("v_lshlrev_b32 v2, 12, v2"); a.e("v_and_b32 v3, 7, v1"); a.e("v_lshl_add_u32 v61, v3, 7, v2")
        a.e(f"s_mul_i32 s66, {sJ}, {86*4096}"); a.e(f"s_lshr_b32 s54, {sG}, 1"); a.e("s_lshl_b32 s54, s54, 10"); a.e("s_add_u32 s66, s66, s54")
        a.e(f"s_lshl_b32 s54, {sW}, 14"); a.e("s_add_u32 s54, s54, s66")
        if TOUCH:
            a.e("s_mov_b64 exec, 0xffffffff")
            a.e(f"buffer_load_dword v63, v61, {W2}, s54 offen", tag="touch")
            a.e("s_mov_b64 exec, -1")
        fl = feats(AK, store_k)
        for i in range(16): a.e(f"v_mul_f32 v{AV+i}, v{AV+i}, v23")
        self.pack(AV, AV, 8)
        for q in range(4): a.e(f"ds_write_b64 v{8+q}, v[{AV+2*q}:{AV+2*q+1}]")
        for s_, t_ in fl: a.e(s_, tag=t_)
        self.stamp(27, fine=True)
        a.e("v_bfe_u32 v2, v1, 2, 2"); a.e("v_lshrrev_b32 v3, 5, v1"); a.e("v_lshl_add_u32 v4, v3, 3, v2")
        a.e("v_lshrrev_b32 v32, 1, v4"); a.e("v_lshlrev_b32 v4, 6, v4")
        a.e("v_and_b32 v33, 3, v1"); a.e("v_bfe_u32 v34, v1, 4, 1"); a.e("v_lshl_add_u32 v34, v34, 2, v33")
        a.e(f"s_and_b32 s54, {sW}, 1"); a.e("s_lshl_b32 s54, s54, 2"); a.e("v_add_u32 v33, s54, v33")
        a.e(f"s_lshl_b32 s54, {sTG}, 13"); a.e(f"s_add_u32 s54, s54, {PKB}"); a.e(f"s_lshr_b32 s55, {sTG}, 1"); a.e("s_lshl_b32 s55, s55, 13"); a.e(f"s_add_u32 s55, s55, {VB}")
        a.e("v_xor_b32 v34, v34, v32"); a.e("v_xor_b32 v33, v33, v32")
        a.e("v_lshl_add_u32 v36, v34, 3, v4"); a.e("v_add_u32 v36, s54, v36"); a.e("v_xor_b32 v37, 16, v36")
        a.e("v_lshl_add_u32 v38, v33, 3, v4"); a.e("v_add_u32 v38, s55, v38"); a.e("v_xor_b32 v39, 16, v38")
        a.e("v_and_b32 v35, 31, v1"); a.e("v_lshlrev_b32 v35, 2, v35"); a.e("v_lshl_add_u32 v35, v3, 9, v35")
        a.e(f"s_lshl_b32 s60, {sHG}, 14"); a.e(f"s_mul_i32 s55, {sTG}, 2176"); a.e("s_add_u32 s60, s60, s55"); a.e(f"s_add_u32 s60, s60, {KV_OFF}")
        a.e("v_and_b32 v2, 16, v1"); a.e("v_cmp_eq_u32 vcc, 0, v2"); a.e("v_mov_b32 v32, s89")
        a.wait(v=("d8", "d9"))
        a.e("s_waitcnt lgkmcnt(0)"); a.e("s_barrier")
        self.stamp(6)
        lab = a.newlabel("Lkv")
        a.e(f"s_cmp_gt_u32 {sW}, 3"); a.e(f"s_cbranch_scc1 {lab}")
        for k in range(8):
            b = 64 + 8 * k
            a.e(f"ds_read_b64_tr_b16 v[{b}:{b+1}], v38 offset:{k*1024}", tag=f"k{k}"); a.e(f"ds_read_b64_tr_b16 v[{b+2}:{b+3}], v39 offset:{k*1024+256}", tag=f"k{k}")
            a.e(f"ds_read_b64_tr_b16 v[{b+4}:{b+5}], v36 offset:{k*1024}", tag=f"k{k}"); a.e(f"ds_read_b64_tr_b16 v[{b+6}:{b+7}], v37 offset:{k*1024+256}", tag=f"k{k}")
        for k in range(8):
            b = 64 + 8 * k
            a.wait(l=(f"k{k}",))
            for i in range(4): a.e(f"v_cndmask_b32 v{b+i}, v32, v{b+i}, vcc")
            a.e(f"v_mfma_f32_32x32x16_bf16 v[40:55], v[{b}:{b+3}], v[{b+4}:{b+7}], " + ("0" if k == 0 else "v[40:55]"))
        a.track = False
        for r in range(8):
            a.e(f"buffer_atomic_add_f32 v{40+r}, v35, {WS}, s60 offen offset:{(8*(r>>2)+(r&3))*128} sc1")
        a.e("s_mov_b64 exec, 0xffffffff")
        a.e(f"buffer_atomic_add_f32 v48, v35, {WS}, s60 offen offset:2048 sc1")
        a.e("s_mov_b64 exec, -1")
        lab2 = a.newlabel("Lkv2")
        a.e(f"s_branch {lab2}")
        a.label(lab)
        if TOUCH:
            a.e(f"s_lshl_b32 s54, {sW}, 15"); a.e("s_add_u32 s54, s54, s66")
            a.e(f"buffer_load_dword v63, v61, {W2}, s54 offen")
        a.label(lab2)
        a.track = True
        self.stamp(7)
        def qread(j):
            c, ks = j >> 2, j & 3
            r = 112 + 4 * (j % 4); off = (c & 3) * 8192 + ks * 2048; va = 16 + (c >> 2)
            a.e(f"ds_read_b64_tr_b16 v[{r}:{r+1}], v{va} offset:{off}", tag=f"f{j}"); a.e(f"ds_read_b64_tr_b16 v[{r+2}:{r+3}], v{va} offset:{off+512}", tag=f"f{j}")
        for j in range(3): qread(j)
        for j in range(32):
            c, ks = j >> 2, j & 3
            if j == KVJ:
                lk = a.newlabel("Lkf")
                a.e(f"s_cmp_gt_u32 {sW}, 3"); a.e(f"s_cbranch_scc1 {lk}")
                a.track = False
                a.e(f"v_mov_b32 v2, {sN0}"); a.e(f"v_mov_b32 v3, {sN1}"); a.e("v_mov_b32 v4, 0"); a.e("v_mov_b32 v5, 1"); a.e(f"v_mov_b32 v68, {LDS_BYTES-4}")
                a.e("s_waitcnt vmcnt(0)"); a.e("s_mov_b64 exec, 1")
                a.e("ds_add_rtn_u32 v5, v68, v5"); a.e("s_waitcnt lgkmcnt(0)"); a.e("v_readfirstlane_b32 s95, v5")
                lk2 = a.newlabel("Lkf2")
                a.e("s_cmp_lg_u32 s95, 3"); a.e(f"s_cbranch_scc1 {lk2}")
                a.e(f"buffer_store_dwordx2 v[2:3], v4, {WS}, s63 offen sc1")
                a.label(lk2); a.e("s_mov_b64 exec, -1")
                self.stamp(8)
                a.track = True
                a.label(lk)
            if ks == 0: csread(18 + (c >> 2), (c & 3) * 8192, 64)
            if j + 3 < 32: qread(j + 3)
            a.wait(l=(f"f{j}",))
            r = 112 + 4 * (j % 4)
            a.e(f"v_mfma_f32_32x32x16_bf16 v[{AQ}:{AQ+15}], v[{r}:{r+3}], v[{XR+4*j}:{XR+4*j+3}], " + ("0" if j == 0 else f"v[{AQ}:{AQ+15}]"))
            if ks == 3: a.wait(l=("cs",)); csacc(30, 64)
        assert not pend
        self.stamp(28, fine=True)
        a.e("s_nop 2"); a.e("ds_write_b32 v20, v30 offset:4096")
        a.e("v_and_b32 v2, 15, v1"); a.e("v_lshlrev_b32 v2, 3, v2"); a.e(f"v_add_u32 v2, {sHG}, v2")
        a.e("v_lshlrev_b32 v31, 7, v2"); a.e(f"v_add_u32 v31, {FL_KV}, v31")
        a.e("s_waitcnt lgkmcnt(0)"); a.e("s_barrier")
        correct([(2, AQ)], 32)
        self.poll_issue("v31", 28, "pf")
        self.p2_voff(8)
        AE = int(os.environ.get("AE", "14"))
        for it in self.EARLY[:AE]: self.p2_w(it, 1)
        self.pack(AK, AQ, 8)
        def store_q(hh, P, Gm):
            self.pack(AV + 8 * hh, Gm, 4); self.pack(AV + 8 * hh + 4, P, 4)
        fl = feats(AK, store_q)
        KS = CS + 6144
        half = len(fl) // 2
        for s_, t_ in fl[:half]: a.e(s_, tag=t_)
        self.stamp(29, fine=True)
        self.poll_check("v31", 28, "pf")
        self.stamp(9)
        a.e("v_lshlrev_b32 v2, 4, v0"); a.e(f"s_lshl_b32 s54, {sHG}, 14"); a.e(f"s_add_u32 s54, s54, {KV_OFF}")
        a.e(f"buffer_load_dwordx4 v[40:43], v2, {WS}, s54 offen sc1", tag="kv")
        a.e("s_add_u32 s54, s54, 8192")
        a.e(f"buffer_load_dwordx4 v[44:47], v2, {WS}, s54 offen sc1", tag="kv")
        for s_, t_ in fl[half:]: a.e(s_, tag=t_)
        a.e("v_lshrrev_b32 v3, 3, v0"); a.e("v_mul_u32_u24 v3, 72, v3"); a.e("v_and_b32 v4, 7, v0"); a.e("v_lshl_add_u32 v3, v4, 3, v3"); a.e(f"v_add_u32 v3, {KS}, v3")
        a.e("v_and_b32 v2, 31, v1"); a.e("v_min_u32 v2, 16, v2"); a.e("v_mul_u32_u24 v2, 72, v2"); a.e("v_lshrrev_b32 v4, 5, v1"); a.e("v_lshl_add_u32 v2, v4, 3, v2")
        a.e(f"s_mul_i32 s54, {sHP}, {34*72}"); a.e(f"s_add_u32 s54, s54, {KS}"); a.e("v_add_u32 v2, s54, v2")
        a.e(f"s_lshl_b32 s54, {sTB}, 2"); a.e(f"s_add_u32 s54, s54, {sTG}"); a.e("s_lshl_b32 s54, s54, 15")
        a.e(f"s_lshl_b32 s55, {sHG}, 1"); a.e(f"s_add_u32 s55, s55, {sHP}"); a.e("s_lshl_b32 s55, s55, 11"); a.e("s_add_u32 s54, s54, s55"); a.e(f"s_add_u32 s54, s54, {OF_OFF}")
        self.stamp(30, fine=True)
        a.wait(v=("kv",))
        self.stamp(31, fine=True)
        self.pack(48, 40, 4)
        a.e("ds_write_b64 v3, v[48:49]")
        a.e("v_cmp_gt_u32 vcc, 32, v0"); a.e("s_and_saveexec_b64 s[90:91], vcc")
        a.e(f"ds_write_b64 v3, v[50:51] offset:{64*72}")
        a.e("s_mov_b64 exec, -1")
        a.e("s_waitcnt lgkmcnt(0)"); a.e("s_barrier")
        for hh in range(2):
            for q in range(4):
                r = 128 + 8 * hh + 2 * q
                a.e(f"ds_read_b64 v[{r}:{r+1}], v2 offset:{hh*17*72 + q*16}", tag=f"kf{hh}")
        for hh in range(2):
            a.wait(l=(f"kf{hh}",))
            d = 160 + 16 * hh; r = 128 + 8 * hh; p = AV + 8 * hh
            a.e(f"v_mfma_f32_32x32x16_bf16 v[{d}:{d+15}], v[{r}:{r+3}], v[{p}:{p+3}], 0")
            a.e(f"v_mfma_f32_32x32x16_bf16 v[{d}:{d+15}], v[{r+4}:{r+7}], v[{p+4}:{p+7}], v[{d}:{d+15}]")
        for hh in range(2):
            d = 160 + 16 * hh
            a.e(f"v_add_f32 v{d+8}, {f2h(1e-6)}, v{d+8}"); a.e(f"v_rcp_f32 v{d+8}, v{d+8}")
            for i in range(8): a.e(f"v_mul_f32 v{d+i}, v{d+i}, v{d+8}")
            o = 32 + 4 * hh
            self.pack(o, d, 4)
            a.e(f"buffer_store_dwordx4 v[{o}:{o+3}], v6, {WS}, s54 offen offset:{hh*1024} sc1")
        a.e("s_waitcnt vmcnt(0)"); a.e("s_barrier")
        self.flag_store("s61")
        self.stamp(10)
        for it in self.EARLY[AE:]: self.p2_w(it, 1)
        self.p2_enter_sym()
    def role_b(self):
        a = self.a
        sDB, sFB, sKH, sPH, sROT = "s56", "s57", "s58", "s59", "s51"
        NWS, WSB, NPS, PSB = NWS_, 12288, NPS_, 8192
        PBASE = NWS * WSB; assert PBASE + NPS * PSB <= LDS_BYTES - 64
        CNT = LDS_BYTES - 16
        if BMAP == 24:
            a.e(f"s_lshr_b32 {sFB}, {sG}, 1"); a.e(f"s_lshl_b32 {sFB}, {sFB}, 2"); a.e(f"s_bfe_u32 s54, {sJ}, 0x20002"); a.e(f"s_add_u32 {sFB}, {sFB}, s54")
            a.e(f"s_and_b32 {sDB}, {sG}, 1"); a.e(f"s_lshl_b32 {sDB}, {sDB}, 2"); a.e(f"s_and_b32 s55, {sJ}, 3"); a.e(f"s_add_u32 {sDB}, {sDB}, s55")
            a.e(f"s_add_u32 {sROT}, s54, s55"); a.e(f"s_lshl_b32 {sROT}, {sROT}, 3"); a.e(f"s_and_b32 s54, {sDB}, 4"); a.e(f"s_add_u32 {sROT}, {sROT}, s54")
        else:
            a.e(f"s_lshl_b32 {sFB}, {sG}, 1"); a.e(f"s_bfe_u32 s54, {sJ}, 0x10003"); a.e(f"s_add_u32 {sFB}, {sFB}, s54"); a.e(f"s_and_b32 {sDB}, {sJ}, 7")
            a.e(f"s_lshl_b32 {sROT}, {sDB}, 2"); a.e("s_lshl_b32 s54, s54, 4"); a.e(f"s_add_u32 {sROT}, {sROT}, s54")
        a.e(f"s_cmp_ge_u32 {sFB}, 15"); a.e("s_cbranch_scc1 L_roleS")
        q0 = list(a.vq)
        a.e(f"s_cmp_lt_u32 {sW}, 4"); a.e("s_cbranch_scc1 L_bcons")
        a.e(f"s_and_b32 s67, {sW}, 3")
        a.e(f"s_mul_i32 s54, s67, {16*2752}"); a.e(f"s_mul_i32 s55, {sFB}, 192"); a.e("s_add_u32 s54, s54, s55")
        for i in range(3):
            a.e(f"v_add_u32 v2, {64*i}, v1"); a.e("v_mul_u32_u24 v3, 5462, v2"); a.e("v_lshrrev_b32 v3, 16, v3")
            a.e("v_mul_u32_u24 v4, 12, v3"); a.e("v_sub_u32 v4, v2, v4")
            a.e(f"v_mul_u32_u24 v3, 2752, v3"); a.e(f"v_lshl_add_u32 v{44+i}, v4, 4, v3"); a.e(f"v_add_u32 v{44+i}, s54, v{44+i}")
        a.e("s_mul_i32 s64, s67, 3072")
        def wdma(n):
            a.e(f"s_add_u32 s65, {sROT}, {n}"); a.e("s_and_b32 s65, s65, 31"); a.e(f"s_mul_i32 s65, s65, {64*2752}")
            for i in range(3):
                a.e(f"s_add_u32 m0, s64, {(n % NWS)*WSB + i*1024}")
                a.e(f"buffer_load_dwordx4 v{44+i}, {W1}, s65 offen {'nt ' if n < NT else ''}lds", tag=f"w{n}")
        def pdma(n):
            a.e(f"s_add_u32 s65, {sROT}, {n}"); a.e("s_and_b32 s65, s65, 31"); a.e("s_lshl_b32 s65, s65, 12"); a.e("s_add_u32 s65, s65, s60")
            a.e(f"s_add_u32 m0, s63, {(n % NPS)*PSB}")
            a.e(f"buffer_load_dwordx4 v6, {WS}, s65 offen sc1 lds", tag=f"p{n}")
            a.e(f"buffer_load_dwordx4 v6, {WS}, s65 offen offset:1024 sc1 lds", tag=f"p{n}")
        a.e(f"s_and_b32 s54, {sJ}, 15"); a.e("s_lshl_b32 s54, s54, 2"); a.e("s_add_u32 s54, s54, s67")
        a.e("v_lshrrev_b32 v10, 3, v1"); a.e("v_mul_u32_u24 v10, 3072, v10"); a.e("v_bfe_u32 v11, v1, 2, 1"); a.e("v_lshl_add_u32 v10, v11, 10, v10")
        a.e("v_and_b32 v11, 3, v1"); a.e("v_lshl_add_u32 v10, v11, 7, v10")
        a.e("s_mul_i32 s55, s54, 24576"); a.e(f"s_and_b32 s65, {sG}, 1"); a.e("s_lshl_b32 s65, s65, 9"); a.e("s_add_u32 s55, s55, s65"); a.e("s_add_u32 s55, s55, 1024")
        a.e(f"buffer_load_dword v13, v10, {WQKV}, s55 offen", tag="warm")
        a.e("s_lshr_b32 s55, s54, 4"); a.e("s_lshl_b32 s55, s55, 17"); a.e("s_and_b32 s54, s54, 15"); a.e("s_lshl_b32 s54, s54, 12"); a.e("s_add_u32 s55, s55, s54")
        a.e("s_xor_b32 s65, s65, 512"); a.e("s_lshl_b32 s65, s65, 7"); a.e("s_add_u32 s55, s55, s65"); a.e(f"s_lshr_b32 s65, {sG}, 1"); a.e("s_lshl_b32 s65, s65, 19"); a.e("s_add_u32 s55, s55, s65")
        a.e("v_lshlrev_b32 v10, 7, v1"); a.e("s_mov_b64 exec, 0xffffffff")
        a.e(f"buffer_load_dword v12, v10, {X}, s55 offen", tag="warm")
        a.e("s_mov_b64 exec, -1")
        self.nonce_issue(8, 4)
        a.e(f"s_lshl_b32 s60, {sDB}, 1"); a.e("s_lshr_b32 s54, s67, 1"); a.e("s_add_u32 s60, s60, s54"); a.e("s_lshl_b32 s60, s60, 17")
        a.e("s_and_b32 s54, s67, 1"); a.e("s_lshl_b32 s54, s54, 11"); a.e("s_add_u32 s60, s60, s54"); a.e(f"s_add_u32 s60, s60, {HF_OFF}")
        a.e("s_lshl_b32 s63, s67, 11"); a.e(f"s_add_u32 s63, s63, {PBASE}")
        self.p2_ids()
        if WAITW: self.nonce_get(8, 4)
        self.stamp(2)
        for n in range(PRE): wdma(n)
        if not WAITW: self.nonce_get(8, 4)
        self.p2_setup_loader()
        self.stamp(3)
        a.e("s_barrier")
        for n in range(NPS - 1): pdma(n)
        a.wait(v=("p0", "p1"))
        a.e("s_barrier")
        LASTB = 32 - NPS + 2
        nw = PRE
        for t in range(LASTB):
            if t + NPS - 1 < 32: pdma(t + NPS - 1)
            k = 0
            while nw < 32 and nw <= t + NWS - 1 and k < 2: wdma(nw); nw += 1; k += 1
            a.wait(v=(f"p{t+2}", f"w{t+2}") + (("p31", "w31") if t == LASTB - 1 else ()))
            a.e("s_barrier")
        assert nw == 32
        busy = [(n % NWS * WSB, WSB) for n in range(LASTB, 32)] + [(PBASE + n % NPS * PSB, PSB) for n in range(LASTB, 32)]
        def free(lo, ln, extra=()): return all(lo + ln <= b or b + l <= lo for b, l in list(busy) + list(extra))
        X0 = [x for x in range(0, 20481, 4096) if free(x, 12288)][0]
        X1 = [x for x in list(range(131072, 147457, 4096)) + list(range(0, 20481, 4096)) if free(x, 12288, [(X0, 12288)])][0]
        XCH = (X0, X1)
        first = [it for it in self.EARLY if free(self.p2_slot(it) * 8192, 8192)]
        for it in first: self.p2_w(it, 2)
        a.e(f"v_mov_b32 v25, {CNT}")
        lp = a.newlabel("Lbw"); dn = a.newlabel("Lbd")
        a.e("s_mov_b32 s96, 0"); a.label(lp)
        a.e("ds_read_b32 v2, v25"); a.e("s_waitcnt lgkmcnt(0)"); a.e("v_readfirstlane_b32 s95, v2")
        a.e("s_cmp_ge_u32 s95, 4"); a.e(f"s_cbranch_scc1 {dn}")
        a.e("s_sleep 1"); a.e("s_add_u32 s96, s96, 1"); a.e("s_cmp_lt_u32 s96, 1000000"); a.e(f"s_cbranch_scc1 {lp}")
        a.label(dn)
        for it in self.EARLY:
            if it not in first: self.p2_w(it, 2)
        assert X0 + 12288 <= 16384 and 131072 <= X1
        a.e("s_branch L_pload")
        a.label("L_bcons"); a.vq = list(q0); a.lq = []
        a.e(f"s_lshr_b32 {sKH}, {sW}, 1"); a.e(f"s_and_b32 {sPH}, {sW}, 1")
        self.nonce_issue(8, 4)
        ACC, FB = 64, 112
        a.e("v_lshrrev_b32 v3, 5, v1"); a.e("v_lshlrev_b32 v2, 3, v3"); a.e(f"s_mul_i32 s54, {sFB}, 192"); a.e(f"s_mul_i32 s55, {sKH}, 96"); a.e("s_add_u32 s54, s54, s55")
        for i in range(6):
            a.e(f"buffer_load_dwordx2 v[{40+2*i}:{41+2*i}], v2, {B1}, s54 offen offset:{16*i}", tag="b1")
        self.p2_ids()
        a.e("v_bfe_u32 v2, v1, 2, 2"); a.e("v_lshl_add_u32 v2, v3, 3, v2"); a.e("v_mul_u32_u24 v2, 192, v2"); a.e("v_and_b32 v5, 3, v1"); a.e("v_lshl_add_u32 v2, v5, 3, v2")
        a.e(f"s_mul_i32 s54, {sKH}, {32*192}"); a.e("v_add_u32 v2, s54, v2")
        a.e("v_bfe_u32 v5, v1, 4, 1"); a.e(f"s_mul_i32 s54, {sKH}, 3"); a.e("v_add_u32 v5, s54, v5")
        for f in range(3):
            a.e(f"v_add_u32 v10, {2*f}, v5"); a.e("v_subrev_u32 v11, 6, v10"); a.e("v_min_u32 v10, v10, v11")
            a.e(f"v_lshl_add_u32 v{16+f}, v10, 5, v2"); a.e(f"v_add_u32 v{19+f}, {5*WSB}, v{16+f}")
        a.e(f"s_lshl_b32 s54, {sPH}, 12"); a.e(f"s_lshl_b32 s55, {sKH}, 11"); a.e("s_add_u32 s54, s54, s55"); a.e(f"s_add_u32 s54, s54, {PBASE}"); a.e("v_add_u32 v22, s54, v6")
        a.e(f"s_mul_i32 s54, {sPH}, 6144"); a.e("v_add_u32 v2, s54, v6"); a.e(f"s_cmp_eq_u32 {sKH}, 0")
        a.e(f"s_cselect_b32 s54, {XCH[0]}, {XCH[1]}") if False else None
        a.e(f"s_mov_b32 s54, {XCH[0]}"); a.e(f"s_mov_b32 s55, {XCH[1]}"); a.e("s_cselect_b32 s65, s54, s55"); a.e("s_cselect_b32 s66, s55, s54")
        a.e("v_add_u32 v23, s65, v2"); a.e("v_add_u32 v24, s66, v2")
        a.e(f"v_mov_b32 v25, {CNT}")
        a.e(f"s_lshl_b32 s60, {sDB}, 1"); a.e(f"s_add_u32 s60, s60, {sPH}"); a.e(f"s_mul_i32 s60, s60, {UPITCH}"); a.e(f"s_mul_i32 s54, {sFB}, 6"); a.e("s_add_u32 s60, s60, s54")
        a.e(f"s_mul_i32 s54, {sKH}, 3"); a.e("s_add_u32 s60, s60, s54"); a.e("s_lshl_b32 s60, s60, 10"); a.e(f"s_add_u32 s60, s60, {UF_OFF}")
        a.e(f"s_mul_i32 s61, {sDB}, 15"); a.e(f"s_add_u32 s61, s61, {sFB}"); a.e("s_lshl_b32 s61, s61, 7"); a.e(f"s_add_u32 s61, s61, {FL_U}")
        c0 = -2.0 * math.sqrt(2.0 / math.pi) * LOG2E
        a.e(f"v_mov_b32 v12, {f2h(c0 * 0.044715)}"); a.e("v_mov_b32 v13, v12"); a.e(f"v_mov_b32 v14, {f2h(c0)}"); a.e("v_mov_b32 v15, v14"); a.e("v_mov_b32 v26, 1.0"); a.e("v_mov_b32 v27, 1.0")
        a.e("v_and_b32 v2, 31, v1"); a.e(f"s_lshl_b32 s54, {sW}, 5"); a.e("v_add_u32 v2, s54, v2")
        a.e("v_lshlrev_b32 v10, 7, v2"); a.e(f"v_add_u32 v10, {FL_LN}, v10")
        a.wait(v=("b1",))
        self.unpack(ACC, 40, 12)
        for i in range(24): a.e(f"v_mov_b32 v{ACC+24+i}, 0")
        self.p2_setup_consumer()
        self.nonce_get(8, 4)
        self.poll("v10", nl=32)
        self.stamp(4)
        a.e("s_barrier")
        def rd(j):
            t, ks = j >> 1, j & 1
            b = FB + 16 * (j % 3)
            a.e(f"ds_read_b128 v[{b}:{b+3}], v22 offset:{(t % NPS)*PSB + ks*1024}", tag=f"f{j}")
            sl = t % NWS
            for f in range(3):
                off = (sl % 5) * WSB + ks * 3072; va = 16 + 3 * (sl // 5) + f; r = b + 4 + 4 * f
                a.e(f"ds_read_b64_tr_b16 v[{r}:{r+1}], v{va} offset:{off}", tag=f"f{j}"); a.e(f"ds_read_b64_tr_b16 v[{r+2}:{r+3}], v{va} offset:{off+768}", tag=f"f{j}")
        for j in range(64):
            t, ks = j >> 1, j & 1
            if ks == 0:
                if t % 2 == 0: self.stamp(16 + t // 2, fine=True)
                if t <= LASTB: a.e("s_barrier")
                if t == 0: rd(0); rd(1)
                if t == 1: a.e("v_mov_b32 v2, 0"); a.e("ds_write_b32 v25, v2"); a.e("ds_write_b32 v25, v2 offset:4")
            a.wait(l=(f"f{j}",))
            b = FB + 16 * (j % 3)
            rs = self.capture(lambda: rd(j + 2)) if j + 2 < 64 else []
            for f in range(3):
                c = ACC + 16 * f
                a.e(f"v_mfma_f32_32x32x16_bf16 v[{c}:{c+15}], v[{b+4+4*f}:{b+7+4*f}], v[{b}:{b+3}], v[{c}:{c+15}]")
                for s_, t_ in rs[(0, 3, 5)[f]:(3, 5, 7)[f]]: a.e(s_, tag=t_)
        self.stamp(5)
        for i in range(6): a.e(f"ds_write_b128 v24, v[{ACC+24+4*i}:{ACC+27+4*i}] offset:{i*1024}")
        a.e("s_waitcnt lgkmcnt(0)")
        self.lds_sync("v25", 4, 2)
        for i in range(6): a.e(f"ds_read_b128 v[{112+4*i}:{115+4*i}], v23 offset:{i*1024}", tag=f"x{i>>1}")
        for u in range(3):
            A = ACC + 8 * u; Pn = 112 + 8 * u; T = 136 + 8 * u
            a.wait(l=(f"x{u}",))
            P2 = lambda r: f"v[{r}:{r+1}]"
            for i in range(0, 8, 2): a.e(f"v_pk_add_f32 {P2(A+i)}, {P2(A+i)}, {P2(Pn+i)}")
            for i in range(0, 8, 2): a.e(f"v_pk_mul_f32 {P2(T+i)}, {P2(A+i)}, {P2(A+i)}")
            for i in range(0, 8, 2): a.e(f"v_pk_fma_f32 {P2(T+i)}, {P2(T+i)}, v[12:13], v[14:15]")
            for i in range(0, 8, 2): a.e(f"v_pk_mul_f32 {P2(T+i)}, {P2(T+i)}, {P2(A+i)}")
            for i in range(8): a.e(f"v_exp_f32 v{T+i}, v{T+i}")
            for i in range(0, 8, 2): a.e(f"v_pk_add_f32 {P2(T+i)}, {P2(T+i)}, v[26:27]")
            for i in range(8): a.e(f"v_rcp_f32 v{T+i}, v{T+i}")
            for i in range(0, 8, 2): a.e(f"v_pk_mul_f32 {P2(T+i)}, {P2(T+i)}, {P2(A+i)}")
            o = 40 + 4 * u
            self.pack(o, T, 4)
            a.e(f"buffer_store_dwordx4 v[{o}:{o+3}], v6, {WS}, s60 offen offset:{u*1024} sc1")
        self.stamp(6)
        a.e(f"v_mov_b32 v2, {sN0}"); a.e(f"v_mov_b32 v3, {sN1}"); a.e("v_mov_b32 v5, 1")
        a.e("s_mov_b64 exec, 1")
        a.e("s_waitcnt vmcnt(0)")
        a.e("ds_add_rtn_u32 v5, v25, v5 offset:4"); a.e("s_waitcnt lgkmcnt(0)"); a.e("v_readfirstlane_b32 s95, v5")
        lab = a.newlabel("Lnf")
        a.e("s_cmp_lg_u32 s95, 3"); a.e(f"s_cbranch_scc1 {lab}")
        a.e(f"buffer_store_dwordx2 v[2:3], v4, {WS}, s61 offen sc1")
        a.label(lab)
        a.e("s_mov_b64 exec, -1")
        self.stamp(10)
    def role_s(self):
        a = self.a
        self.nonce_issue(8, 4)
        for i in range(4): a.e(f"v_mov_b32 v{28+i}, 0")
        a.e("v_lshlrev_b32 v23, 4, v0"); a.e("s_lshl_b32 s54, s56, 14"); a.e(f"s_add_u32 s54, s54, {KV_OFF}")
        a.e(f"buffer_store_dwordx4 v[28:31], v23, {WS}, s54 offen sc1")
        a.e("s_add_u32 s54, s54, 8192")
        a.e(f"buffer_store_dwordx4 v[28:31], v23, {WS}, s54 offen sc1")
        self.p2_ids(); self.p2_voff(8)
        a.e("s_waitcnt vmcnt(0)")
        self.nonce_get(8, 4)
        a.e("s_barrier")
        a.e("s_add_u32 s54, s56, 128"); a.e("s_lshl_b32 s54, s54, 7"); a.e(f"s_add_u32 s54, s54, {FL_LN}")
        self.flag_store("s54")
        self.stamp(3)
        a.e("v_lshlrev_b32 v10, 7, v1"); a.e(f"v_add_u32 v10, {FL_KV}, v10")
        self.poll("v10", nl=1)
        for it in self.EARLY: self.p2_w(it, 1)
        self.p2_enter_sym()
    def phase2(self):
        a = self.a
        W2SLOT, WOSLOT, URING, NREG = self.W2SLOT, self.WOSLOT, self.URING, self.NREG
        NU = len(URING)
        UB = [2, 4, 6, 8, 11, 14, 17, 20, 22]
        SFIN, YFIN = 9 * 8192, 4 * 8192
        a.label("L_pcons"); a.vq = []; a.lq = []
        AY, WR = 64, 112
        FBS = (8, 40, 96)
        def w2read(n, ks, r, tag=None):
            sl = W2SLOT[n]; off = (sl % 8) * 8192 + ks * 2048; va = 32 + sl // 8
            a.e(f"ds_read_b64_tr_b16 v[{r}:{r+1}], v{va} offset:{off}", tag=tag); a.e(f"ds_read_b64_tr_b16 v[{r+2}:{r+3}], v{va} offset:{off+1024}", tag=tag)
        def copy(lo, hi):
            for n in range(lo, hi):
                for ks in range(2): w2read(n, ks, WR + 8 * n + 4 * ks)
            a.e("s_waitcnt lgkmcnt(0)")
        def stage_out(acc, va, off):
            for dh in range(2):
                for q in range(4): a.e(f"ds_write_b128 v{va}, v[{acc+16*dh+4*q}:{acc+16*dh+4*q+3}] offset:{off + dh*128 + q*32}")
        a.e("s_waitcnt vmcnt(0)"); a.e("s_barrier")
        self.stamp(11)
        copy(0, 6); a.e("s_barrier")
        a.e("s_barrier")
        copy(6, 12); a.e("s_barrier")
        copy(12, 18)
        self.stamp(15)
        def urd(j):
            n, ks = j >> 1, j & 1
            b = FBS[j % 3]; sl = URING[n % NU]
            for dh in range(2):
                a.e(f"ds_read_b128 v[{b+4*dh}:{b+4*dh+3}], v{58+sl//8} offset:{(sl % 8)*8192 + dh*4096 + ks*1024}", tag=f"f{j}")
            if n >= NREG: w2read(n, ks, b + 8, tag=f"f{j}")
        nrd = 0; ncomp = 0
        def comp(j):
            a.wait(l=(f"f{j}",))
            b = FBS[j % 3]; n = j >> 1
            w = b + 8 if n >= NREG else WR + 4 * j
            for dh in range(2):
                c = AY + 16 * dh
                a.e(f"v_mfma_f32_32x32x16_bf16 v[{c}:{c+15}], v[{b+4*dh}:{b+4*dh+3}], v[{w}:{w+3}], " + ("0" if j == 0 else f"v[{c}:{c+15}]"))
        for k, ub in enumerate(UB):
            self.stamp(40 + k, fine=True)
            a.e("s_barrier")
            if k == 0: self.stamp(12)
            while nrd < 2 * ub:
                urd(nrd); nrd += 1
                if nrd - ncomp >= 3: comp(ncomp); ncomp += 1
        while ncomp < 44: comp(ncomp); ncomp += 1
        self.stamp(13)
        stage_out(AY, 54, YFIN)
        a.e("s_branch L_fin")
        a.label("L_pload"); a.vq = []; a.lq = []
        AS, OR, WOR = 8, 64, 128
        ASB = (8, 40)
        def ud(n):
            a.e(f"s_add_u32 m0, s69, {URING[n % NU]*8192}")
            a.e(f"buffer_load_dwordx4 v6, {WS}, s{70+n} offen sc1 lds", tag=f"u{n}"); a.e(f"buffer_load_dwordx4 v6, {WS}, s{70+n} offen offset:1024 sc1 lds", tag=f"u{n}")
        def oload(half):
            for k in range(4 * half, 4 * half + 4):
                a.e(f"s_add_u32 s65, s97, {k}"); a.e("s_and_b32 s65, s65, 7"); a.e("s_lshl_b32 s65, s65, 12"); a.e("s_add_u32 s65, s65, s92")
                for ks in range(2):
                    r = 96 + 8 * (k % 4) + 4 * ks
                    a.e(f"buffer_load_dwordx4 v[{r}:{r+3}], v6, {WS}, s65 offen offset:{ks*1024} sc1", tag=f"o{k}")
        def wocomp(k):
            a.wait(v=(f"o{k}",))
            for ks in range(2):
                j = 2 * k + ks; r = 96 + 8 * (k % 4) + 4 * ks
                for dh in range(2):
                    c = 64 + 16 * dh; w = WOR + 8 * j + 4 * dh
                    a.e(f"v_mfma_f32_32x32x16_bf16 v[{c}:{c+15}], v[{w}:{w+3}], v[{r}:{r+3}], " + ("0" if j == 0 else f"v[{c}:{c+15}]"))
        w2 = lambda n: self.p2_w(("w2", n), 2)
        a.e("s_waitcnt vmcnt(0)"); a.e("s_barrier")
        self.stamp(11)
        w2(6); w2(7)
        for k in range(8):
            sl = WOSLOT[k]
            for ks in range(2):
                for dh in range(2):
                    off = (sl % 8) * 8192 + ks * 2048; va = 28 + 2 * (sl // 8) + dh; r = WOR + 16 * k + 8 * ks + 4 * dh
                    a.e(f"ds_read_b64_tr_b16 v[{r}:{r+1}], v{va} offset:{off}"); a.e(f"ds_read_b64_tr_b16 v[{r+2}:{r+3}], v{va} offset:{off+1024}")
            if k % 2: w2(18 + k // 2)
        a.e("s_waitcnt lgkmcnt(0)"); a.e("s_barrier")
        for n in range(8, 18): w2(n)
        self.poll_issue("v59", 8, "pf")
        a.wait(v=("w2_11",)); a.e("s_barrier")
        a.wait(v=("pf",)); a.e("s_barrier")
        a.e(f"v_add_u32 v55, {SFIN}, v54")
        a.e(f"v_cmp_ne_u64 vcc, {sNON}, v[8:9]"); a.e("s_cmp_eq_u64 vcc, 0"); a.e("s_cbranch_scc0 L_plate")
        def ustream(hooks):
            nxt = 0
            for k, ub in enumerate(UB):
                lim = min(22, ub + 5)
                if k == 0: lim = min(lim, 10)
                elif k == 1: lim = min(lim, NU)
                else: lim = min(lim, UB[k - 2] + NU - 1)
                while nxt < lim: ud(nxt); nxt += 1
                if k in hooks: hooks[k]()
                a.wait(v=(f"u{ub-1}",)); a.e("s_barrier")
            assert nxt == 22
        a.vq = []
        oload(0)
        self.poll_issue("v58", 8, "pf")
        for k in range(4): wocomp(k)
        oload(1)
        self.poll_check("v58", 8, "pf")
        self.stamp(15)
        ustream({0: lambda: [wocomp(k) for k in range(4, 8)]})
        a.e("s_branch L_pdone")
        a.label("L_plate"); a.vq = []
        self.poll("v58", nl=15)
        self.stamp(15)
        ustream({5: lambda: self.poll_issue("v59", 8, "pf"), 6: lambda: (self.poll_check("v59", 8, "pf"), oload(0))})
        for k in range(4): wocomp(k)
        oload(1)
        for k in range(4, 8): wocomp(k)
        a.label("L_pdone")
        a.e("s_nop 7"); a.e("s_nop 7")
        stage_out(64, 55, 0)
        a.label("L_fin")
        a.e(f"v_add_u32 v55, {SFIN}, v57")
        a.e("v_lshlrev_b32 v52, 16, v52")
        self.unpack(40, 36, 4)
        a.e("s_waitcnt lgkmcnt(0)"); a.e("s_barrier")
        for arr in range(2):
            for hf in range(2): a.e(f"ds_read_b128 v[{16+8*arr+4*hf}:{19+8*arr+4*hf}], v57 offset:{YFIN + arr*17408 + hf*16}")
        for arr in range(2):
            for hf in range(2): a.e(f"ds_read_b128 v[{128+8*arr+4*hf}:{131+8*arr+4*hf}], v55 offset:{arr*17408 + hf*16}")
        a.e("s_waitcnt lgkmcnt(4)")
        for i in range(8): a.e(f"v_add_f32 v{16+i}, v{16+i}, v{24+i}")
        for i in range(8): a.e(f"v_add_f32 v{16+i}, v{16+i}, v52")
        for i in range(8): a.e(f"v_mul_f32 v{24+i}, v53, v{16+i}")
        for i in range(8): a.e(f"v_exp_f32 v{24+i}, v{24+i}")
        a.e("s_waitcnt lgkmcnt(0)")
        for i in range(8): a.e(f"v_add_f32 v{128+i}, v{128+i}, v{136+i}")
        for i in range(8): a.e(f"v_mul_f32 v{16+i}, v{16+i}, v{128+i}")
        for i in range(8): a.e(f"v_add_f32 v{24+i}, 1.0, v{24+i}")
        for i in range(8): a.e(f"v_rcp_f32 v{24+i}, v{24+i}")
        for i in range(8): a.e(f"v_fma_f32 v{16+i}, v{16+i}, v{24+i}, v{40+i}")
        self.pack(8, 16, 4)
        a.e(f"buffer_store_dwordx4 v[8:11], v56, {OUT}, s94 offen {OUTSC}")
        if PROBE:
            a.e("s_waitcnt vmcnt(0)")
            self.stamp(14)
            lab = a.newlabel("Lpr"); lp = a.newlabel("Lprl")
            a.e(f"s_cmp_lg_u32 s2, {PROBE[0]}"); a.e(f"s_cbranch_scc1 {lab}"); a.e(f"s_cmp_lg_u32 {sW}, 0"); a.e(f"s_cbranch_scc1 {lab}")
            a.e(f"s_sub_u32 s98, s98, {sN0}"); a.e(f"s_mul_i32 s98, s98, {PROBE[2]}"); a.e("s_min_u32 s98, s98, 100000")
            a.label(lp)
            a.e("s_memrealtime s[90:91]"); a.e("s_waitcnt lgkmcnt(0)"); a.e(f"s_sub_u32 s90, s90, {sN0}"); a.e("s_cmp_lt_u32 s90, s98"); a.e(f"s_cbranch_scc1 {lp}")
            a.label(lab)
        if self.stamps:
            a.e("s_waitcnt vmcnt(0)")
            self.stamp(14)
            a.e("v_lshlrev_b32 v2, 2, v0"); a.e("s_lshl_b32 s54, s2, 11"); a.e(f"s_add_u32 s54, s54, {STAMP_OFF}")
            a.e(f"buffer_store_dword v7, v2, {WS}, s54 offen")
    def build(self):
        a = self.a
        a.raw(HDR.rstrip())
        a.raw(f"; @launch grid=(256,1,1) block=(512,1,1) lds={LDS_BYTES}")
        a.raw('.amdgcn_target "amdgcn-amd-amdhsa--gfx950"'); a.raw(".text"); a.raw(f".globl {NAME}_kernel"); a.raw(".p2align 8")
        a.raw(f".type {NAME}_kernel,@function"); a.label(f"{NAME}_kernel")
        self.prologue()
        q0 = list(a.vq)
        a.e(f"s_cmp_lt_u32 {sJ}, 16"); a.e("s_cbranch_scc1 L_roleA")
        self.role_b()
        self.phase2()
        a.e("s_endpgm")
        a.label("L_roleS"); a.vq = list(q0); a.lq = []
        self.role_s()
        a.label("L_roleA"); a.vq = list(q0); a.lq = []
        self.role_a()
        a.label("L_end")
        a.e("s_endpgm")
        a.raw('.section .rodata,"a"'); a.raw(".p2align 6"); a.raw(f".amdhsa_kernel {NAME}_kernel")
        for l in ("next_free_vgpr 256", "next_free_sgpr 102", "accum_offset 256", "group_segment_fixed_size 0", "kernarg_size 96",
                  "user_sgpr_count 2", "user_sgpr_kernarg_segment_ptr 1", "system_sgpr_workgroup_id_x 1", "float_denorm_mode_32 " + os.environ.get("DENORM", "3")):
            a.raw("  .amdhsa_" + l)
        a.raw(".end_amdhsa_kernel")
        return a.render()

if __name__ == "__main__":
    stamps = "--stamps" in sys.argv
    out = [x for x in sys.argv[1:] if not x.startswith("--")]
    g = G(stamps)
    txt = g.build()
    open(out[0] if out else "k.s", "w").write(txt)
    print("lines", txt.count("\n"), "nops", g.a.nops)
```
